```python
import torch

def _softmax(x, axis=-1):
    return torch.softmax(x, dim=axis)

def _gelu(x):
    return torch.nn.functional.gelu(x, approximate='tanh')

def _silu(x):
    return torch.nn.functional.silu(x)

def _sigmoid(x):
    return torch.sigmoid(x)

def _layernorm(x, axis=-1, eps=1e-05):
    m = x.mean(dim=axis, keepdim=True)
    v = x.var(dim=axis, keepdim=True, unbiased=False)
    return (x - m) / torch.sqrt(v + eps)

def _scatter_add(tgt, idx, src, axis=0):
    return tgt.clone().index_add_(axis, idx, src)

def _segment_sum(src, seg, n):
    out = torch.zeros((n,) + src.shape[1:], dtype=src.dtype)
    return out.index_add_(0, seg, src)

def _pad(x, pw):
    flat = tuple((v for pair in reversed(pw) for v in pair))
    return torch.nn.functional.pad(x, flat)
kernel_name = 'standalone__kv_cache_quant_pre_rope_vs_post_rope__sampling'

def setup_inputs():

    _w = lambda a: (lambda t: t.to(torch.bfloat16) if t.is_floating_point() else t)(torch.as_tensor(a))
    B, Sq, Skv = (16, 8, 4096)
    H, Dh0 = (4, 128)
    G = 128 if 128 > 0 else Dh0
    G = max(2, G // 2 * 2)
    Dh = max(G, Dh0 // G * G)
    Skv = max(Skv, Sq)
    ng = Dh // G
    bits = 2 if 2 > 1 else 4
    bits = max(2, min(8, bits))
    qmax = (1 << bits) - 1
    half = Dh // 2
    inv = 1.0 / 10000.0 ** (torch.arange(half) / max(1, half))
    ang_k = torch.arange(Skv)[:, None] * inv[None, :]
    ang_q = torch.arange(Skv - Sq, Skv)[:, None] * inv[None, :]
    kc = torch.cat([torch.cos(ang_k), torch.cos(ang_k)], dim=-1)
    ks = torch.cat([torch.sin(ang_k), torch.sin(ang_k)], dim=-1)
    qc = torch.cat([torch.cos(ang_q), torch.cos(ang_q)], dim=-1)
    qs = torch.cat([torch.sin(ang_q), torch.sin(ang_q)], dim=-1)
    qk_i = torch.randint(0, qmax + 1, (B, H, Skv, Dh)).to(torch.int32)
    qv_i = torch.randint(0, qmax + 1, (B, H, Skv, Dh)).to(torch.int32)
    ksc = torch.abs((lambda *s: torch.randn(*s, dtype=torch.bfloat16) * 0.4)(B, H, Skv, ng)) * 0.1 + 0.01
    kzp = torch.full((B, H, Skv, ng), qmax / 2.0)
    vsc = torch.abs((lambda *s: torch.randn(*s, dtype=torch.bfloat16) * 0.4)(B, H, Skv, ng)) * 0.1 + 0.01
    vzp = torch.full((B, H, Skv, ng), qmax / 2.0)
    return {'q': _w((lambda *s: torch.randn(*s, dtype=torch.bfloat16) * 6.4)(B, H, Sq, Dh) * 0.5), 'qk': _w(qk_i), 'k_scales': _w(ksc), 'k_zeros': _w(kzp), 'qv': _w(qv_i), 'v_scales': _w(vsc), 'v_zeros': _w(vzp), 'q_cos': _w(qc), 'q_sin': _w(qs), 'k_cos': _w(kc), 'k_sin': _w(ks)}

def reference(q, qk, k_scales, k_zeros, qv, v_scales, v_zeros, q_cos, q_sin, k_cos, k_sin):
    B, H, Sq, Dh = q.shape
    ng = k_scales.shape[-1]
    G = Dh // ng
    half = Dh // 2
    ks = (lambda x, n, axis: torch.repeat_interleave(x, n, dim=axis))(k_scales, G, axis=-1)
    kz = (lambda x, n, axis: torch.repeat_interleave(x, n, dim=axis))(k_zeros, G, axis=-1)
    k = ((lambda x, dt: x.to(dt))(qk, q.dtype) - kz) * ks
    vs = (lambda x, n, axis: torch.repeat_interleave(x, n, dim=axis))(v_scales, G, axis=-1)
    vz = (lambda x, n, axis: torch.repeat_interleave(x, n, dim=axis))(v_zeros, G, axis=-1)
    v = ((lambda x, dt: x.to(dt))(qv, q.dtype) - vz) * vs
    k1 = k[..., :half].clone()
    k2 = k[..., half:].clone()
    krh = torch.concatenate([-k2, k1], axis=-1)
    kr = k * k_cos[None, None, :, :] + krh * k_sin[None, None, :, :]
    q1 = q[..., :half].clone()
    q2 = q[..., half:].clone()
    qrh = torch.concatenate([-q2, q1], axis=-1)
    qr = q * q_cos[None, None, :, :] + qrh * q_sin[None, None, :, :]
    logits = torch.einsum('bhqd,bhkd->bhqk', qr, kr) * float(Dh) ** (-0.5)
    attn = _softmax(logits, axis=-1)
    out = torch.einsum('bhqk,bhkd->bhqd', attn, v)
    return out
```

```python
import sys, struct, math

NAME = "standalone__kv_cache_quant_pre_rope_vs_post_rope__sampling"
HEADER = open("cdna_kernels/%s.s.ref" % NAME).read().split("; Override launch")[0]

def f32(x):
    return "0x%08x" % struct.unpack("<I", struct.pack("<f", x))[0]

class Regs:
    def __init__(self, start):
        self.n = start
    def alloc(self, cnt, align=1):
        self.n = (self.n + align - 1) // align * align
        r = self.n
        self.n += cnt
        return r

def vr(a, n=1):
    return f"v{a}" if n == 1 else f"v[{a}:{a+n-1}]"

def gen(mode="atomic", kvpol="nt", cspol="nt", smallpol="", stamps=False):
    NW = 8
    NWG = 256
    NT = 1024 // 16 // NW
    ROW = 272
    WREG = 16 * ROW
    SCB = NW * WREG
    FLAG = SCB + NW * NT * 256
    LDS = FLAG + 256
    OROW = 528
    MLOFF = 8 * OROW
    REC = 640
    kname = NAME + "_kernel"
    L = []
    A = L.append
    A(HEADER.rstrip("\n"))
    if mode == "atomic":
        A(f"; @launch grid=({NWG},1,1) block=({NW*64},1,1) lds={LDS}")
    else:
        A(f"; @launch kernel={kname} grid=({NWG},1,1) block=({NW*64},1,1) lds={LDS}")
        A(f"; @launch kernel=combine_kernel grid=(64,1,1) block=(512,1,1) lds=0")
    A('.amdgcn_target "amdgcn-amd-amdhsa--gfx950"')
    A(".text")
    A(f".globl {kname}")
    A(".p2align 8")
    A(f".type {kname},@function")
    A(f"{kname}:")

    R = Regs(1)
    vC, vG = R.alloc(1), R.alloc(1)
    vKo, vCo, vLw, vLr, vSc = (R.alloc(1) for _ in range(5))
    vM, vL = R.alloc(2, 2), None
    vL = vM + 1
    vAl = R.alloc(2, 2)
    vMn = R.alloc(1)
    vX, vY = R.alloc(1), R.alloc(1)
    K = R.alloc(32, 4)
    CS = R.alloc(32, 4)
    V = R.alloc(32, 4)
    SC = R.alloc(16, 4)
    Q = R.alloc(16, 4)
    O = R.alloc(32, 4)
    F = R.alloc(8, 4)
    T = R.alloc(8, 4)
    W = R.alloc(4, 4)
    G = R.alloc(16, 4)
    VA = R.alloc(16, 4)
    AF = R.alloc(16, 4)
    S = R.alloc(4, 4)
    P = R.alloc(2, 2)
    NV = R.n
    sK, sC, sT, sW = 48, 49, 50, 3
    sSelLo, sSelHi, sScale = 51, 52, 53

    A(f"  s_cmp_ge_u32 s2, {NWG}")
    A("  s_cbranch_scc1 L_end")
    A("  s_load_dwordx16 s[4:19], s[0:1], 0")
    A("  s_load_dwordx8 s[20:27], s[0:1], 64")
    A("  s_load_dwordx4 s[28:31], s[0:1], 96")
    if stamps:
        A("  s_memrealtime s[60:61]")
    A(f"  v_lshrrev_b32 {vr(vX)}, 6, v0")
    A("  v_and_b32 v0, 63, v0")
    A(f"  v_readfirstlane_b32 s{sW}, {vr(vX)}")
    A(f"  v_and_b32 {vr(vC)}, 15, v0")
    A(f"  v_lshrrev_b32 {vr(vG)}, 4, v0")
    A(f"  v_lshlrev_b32 {vr(vKo)}, 4, {vr(vC)}")
    A(f"  v_lshl_add_u32 {vr(vKo)}, {vr(vG)}, 11, {vr(vKo)}")
    A(f"  v_lshrrev_b32 {vr(vCo)}, 1, {vr(vKo)}")
    A(f"  s_lshl_b32 s{sK}, s2, 19")
    A(f"  s_lshl_b32 s54, s{sW}, 13")
    A(f"  s_add_u32 s{sK}, s{sK}, s54")
    A(f"  s_and_b32 s{sC}, s{sK}, {(1<<21)-1}")
    A(f"  s_lshr_b32 s{sC}, s{sC}, 1")
    A(f"  v_lshrrev_b32 {vr(vX)}, 3, v0")
    A(f"  v_lshlrev_b32 {vr(vX)}, 8, {vr(vX)}")
    A(f"  v_and_b32 {vr(vY)}, 7, v0")
    A(f"  v_lshl_add_u32 {vr(vX)}, {vr(vY)}, 2, {vr(vX)}")
    A(f"  s_lshr_b32 s54, s{sK}, 8")
    A(f"  v_add_u32 {vr(vX)}, s54, {vr(vX)}")
    A(f"  v_lshlrev_b32 {vr(vY)}, 8, {vr(vY)}")
    A(f"  v_lshl_add_u32 {vr(vY)}, {vr(vG)}, 5, {vr(vY)}")
    A(f"  s_lshr_b32 s55, s2, 2")
    A(f"  s_lshl_b32 s55, s55, 11")
    A("  s_mov_b32 s34, 0x8000000")
    A("  s_mov_b32 s35, 0x20000")
    A("  s_mov_b32 s38, 0x8000000")
    A("  s_mov_b32 s39, 0x20000")
    A("  s_mov_b32 s42, 0x100000")
    A("  s_mov_b32 s43, 0x20000")
    A("  s_mov_b32 s46, 0x100000")
    A("  s_mov_b32 s47, 0x20000")
    A("  s_waitcnt lgkmcnt(0)")
    A("  s_add_u32 s4, s4, s55")
    A("  s_addc_u32 s5, s5, 0")
    A("  s_mov_b32 s32, s6")
    A("  s_mov_b32 s33, s7")
    A("  s_mov_b32 s36, s12")
    A("  s_mov_b32 s37, s13")
    A("  s_mov_b32 s40, s22")
    A("  s_mov_b32 s41, s23")
    A("  s_mov_b32 s44, s24")
    A("  s_mov_b32 s45, s25")
    QR, QC, QS = O, O + 16, G
    SR = AF
    for i, p in enumerate((8, 10, 14, 16)):
        A(f"  global_load_dword {vr(SR+i)}, {vr(vX)}, s[{p}:{p+1}] {smallpol}")
    for base, p in ((QR, 4), (QC, 18), (QS, 20)):
        for h in range(2):
            for u in range(2):
                A(f"  global_load_dwordx4 {vr(base+8*h+4*u,4)}, {vr(vY)}, s[{p}:{p+1}] offset:{128*h+16*u} {smallpol}")

    def load_k(j):
        for h in range(2):
            A(f"  buffer_load_dwordx4 {vr(K+8*j+4*h,4)}, {vr(vKo)}, s[32:35], s{sK} offen offset:{512*j+256*h} {kvpol}")
        for h in range(2):
            A(f"  buffer_load_dwordx2 {vr(CS+8*j+2*h,2)}, {vr(vCo)}, s[40:43], s{sC} offen offset:{256*j+128*h} {cspol}")
        for h in range(2):
            A(f"  buffer_load_dwordx2 {vr(CS+8*j+4+2*h,2)}, {vr(vCo)}, s[44:47], s{sC} offen offset:{256*j+128*h} {cspol}")
    def load_v(jp):
        for j in (2*jp, 2*jp+1):
            for h in range(2):
                A(f"  buffer_load_dwordx4 {vr(V+8*j+4*h,4)}, {vr(vKo)}, s[36:39], s{sK} offen offset:{512*j+256*h} {kvpol}")
    for j in range(4):
        load_k(j)
    load_v(0); load_v(1)
    A(f"  s_add_u32 s{sK}, s{sK}, {8192*NW}")
    A(f"  s_add_u32 s{sC}, s{sC}, {4096*NW}")

    A(f"  s_mov_b32 s{sSelLo}, 0x05040100")
    A(f"  s_mov_b32 s{sSelHi}, 0x07060302")
    A(f"  s_mov_b32 s{sScale}, {f32(math.log2(math.e) / math.sqrt(128.0))}")
    A(f"  s_mul_i32 s54, s{sW}, {WREG}")
    A(f"  v_mul_u32_u24 {vr(vLw)}, {4*ROW}, {vr(vG)}")
    A(f"  v_lshl_add_u32 {vr(vLw)}, {vr(vC)}, 4, {vr(vLw)}")
    A(f"  v_add_u32 {vr(vLw)}, s54, {vr(vLw)}")
    A(f"  v_mul_u32_u24 {vr(vLr)}, {ROW}, {vr(vC)}")
    A(f"  v_lshl_add_u32 {vr(vLr)}, {vr(vG)}, 6, {vr(vLr)}")
    A(f"  v_add_u32 {vr(vLr)}, s54, {vr(vLr)}")
    A(f"  s_mul_i32 s54, s{sW}, {NT*256}")
    A(f"  s_add_u32 s54, s54, {SCB}")
    A(f"  v_lshlrev_b32 {vr(vSc)}, 6, {vr(vG)}")
    A(f"  v_add_u32 {vr(vSc)}, s54, {vr(vSc)}")
    A(f"  v_lshlrev_b32 {vr(vX)}, 5, v0")
    A(f"  v_add_u32 {vr(vX)}, s54, {vr(vX)}")
    A("  s_waitcnt vmcnt(44)")
    for e in range(2):
        for i in range(4):
            if e == 0:
                A(f"  v_lshlrev_b32 {vr(F+i)}, 16, {vr(SR+i)}")
            else:
                A(f"  v_and_b32 {vr(F+4+i)}, 0xffff0000, {vr(SR+i)}")
    for e in range(2):
        A(f"  v_mul_f32 {vr(F+4*e+1)}, {vr(F+4*e)}, {vr(F+4*e+1)}")
        A(f"  v_mul_f32 {vr(F+4*e+3)}, {vr(F+4*e+2)}, {vr(F+4*e+3)}")
        A(f"  v_xor_b32 {vr(F+4*e+1)}, 0x80000000, {vr(F+4*e+1)}")
        A(f"  v_xor_b32 {vr(F+4*e+3)}, 0x80000000, {vr(F+4*e+3)}")
    A(f"  ds_write_b128 {vr(vX)}, {vr(F,4)}")
    A(f"  ds_write_b128 {vr(vX)}, {vr(F+4,4)} offset:16")
    A("  s_waitcnt lgkmcnt(0)")
    def read_sc():
        for j in range(4):
            A(f"  ds_read_b128 {vr(SC+4*j,4)}, {vr(vSc)} offset:{16*j}")
        A(f"  v_add_u32 {vr(vSc)}, 256, {vr(vSc)}")
    read_sc()
    A("  s_waitcnt vmcnt(32)")
    for i in range(4):
        for u in range(2):
            p = 2*i + u
            for e, sel in enumerate((sSelLo, sSelHi)):
                r = 2*u + e
                A(f"  v_perm_b32 {vr(F+r)}, {vr(QR+8+p)}, {vr(QR+p)}, s{sel}")
                A(f"  v_perm_b32 {vr(T+r)}, {vr(QS+p)}, {vr(QC+p)}, s{sel}")
                A(f"  v_perm_b32 {vr(T+4+r)}, {vr(QC+8+p)}, {vr(QS+8+p)}, s{sel}")
        for r in range(4):
            A(f"  v_dot2_f32_bf16 {vr(T+r)}, {vr(F+r)}, {vr(T+r)}, 0 neg_hi:[0,1,0]")
        for r in range(4):
            A(f"  v_dot2_f32_bf16 {vr(T+4+r)}, {vr(F+r)}, {vr(T+4+r)}, 0")
        A(f"  v_cvt_pk_bf16_f32 {vr(Q+4*i)}, {vr(T)}, {vr(T+1)}")
        A(f"  v_cvt_pk_bf16_f32 {vr(Q+4*i+1)}, {vr(T+2)}, {vr(T+3)}")
        A("  s_nop 0")
        A(f"  v_cvt_pk_bf16_f32 {vr(Q+4*i+2)}, {vr(T+4)}, {vr(T+5)}")
        A(f"  v_cvt_pk_bf16_f32 {vr(Q+4*i+3)}, {vr(T+6)}, {vr(T+7)}")
    for i in range(32):
        A(f"  v_mov_b32 {vr(O+i)}, 0")
    A(f"  v_mov_b32 {vr(vM)}, {f32(-3.0e38)}")
    A(f"  v_mov_b32 {vr(vL)}, 0")
    A(f"  s_mov_b32 s{sT}, {NT}")

    A("L_loop:")
    A(f"  s_cmp_eq_u32 s{sT}, 1")
    A("  s_cselect_b32 s34, 0, s34")
    A("  s_cselect_b32 s38, 0, s38")
    A("  s_cselect_b32 s42, 0, s42")
    A("  s_cselect_b32 s46, 0, s46")
    for j in range(4):
        kj, cj = K + 8*j, CS + 8*j
        A("  s_waitcnt vmcnt(26)" + (" lgkmcnt(0)" if j == 0 else ""))
        for i in range(8):
            A(f"  v_cvt_f32_i32 {vr(F+i)}, {vr(kj+i)}")
        for r in range(4):
            sel = sSelLo if r % 2 == 0 else sSelHi
            A(f"  v_perm_b32 {vr(T+r)}, {vr(cj+4+r//2)}, {vr(cj+r//2)}, s{sel}")
        for r in range(4):
            sel = sSelLo if r % 2 == 0 else sSelHi
            A(f"  v_perm_b32 {vr(T+4+r)}, {vr(cj+2+r//2)}, {vr(cj+6+r//2)}, s{sel}")
        load_k(j)
        for i in range(4):
            A(f"  v_pk_fma_f32 {vr(F+2*i,2)}, {vr(F+2*i,2)}, {vr(SC+4*j,2)}, {vr(SC+4*j,2)} op_sel:[0,0,1] op_sel_hi:[1,0,1]")
        for r in range(4):
            A(f"  v_cvt_pk_bf16_f32 {vr(F+r)}, {vr(F+r)}, {vr(F+4+r)}")
        for r in range(4):
            A(f"  v_dot2_f32_bf16 {vr(T+r)}, {vr(F+r)}, {vr(T+r)}, 0 neg_hi:[0,1,0]")
        for r in range(4):
            A(f"  v_dot2_f32_bf16 {vr(T+4+r)}, {vr(F+r)}, {vr(T+4+r)}, 0")
        A(f"  v_cvt_pk_bf16_f32 {vr(W)}, {vr(T)}, {vr(T+1)}")
        A(f"  v_cvt_pk_bf16_f32 {vr(W+1)}, {vr(T+2)}, {vr(T+3)}")
        A("  s_nop 0")
        A(f"  v_cvt_pk_bf16_f32 {vr(W+2)}, {vr(T+4)}, {vr(T+5)}")
        A(f"  v_cvt_pk_bf16_f32 {vr(W+3)}, {vr(T+6)}, {vr(T+7)}")
        A(f"  ds_write_b128 {vr(vLw)}, {vr(W,4)} offset:{ROW*j}")
    for i in range(4):
        A(f"  ds_read_b128 {vr(AF+4*i,4)}, {vr(vLr)} offset:{16*i}")
    def v_half(jp):
        A("  s_waitcnt vmcnt(28)")
        for i in range(16):
            A(f"  v_cvt_f32_i32 {vr(G+i)}, {vr(V+16*jp+i)}")
        load_v(jp)
        for e in range(2):
            j = 2*jp + e
            for i in range(4):
                A(f"  v_pk_fma_f32 {vr(G+8*e+2*i,2)}, {vr(G+8*e+2*i,2)}, {vr(SC+4*j+2,2)}, {vr(SC+4*j+2,2)} op_sel:[0,0,1] op_sel_hi:[1,0,1]")
        for i in range(8):
            A(f"  v_cvt_pk_bf16_f32 {vr(VA+2*i+jp)}, {vr(G+i)}, {vr(G+8+i)}")
    A("  s_waitcnt lgkmcnt(0)")
    for i in range(4):
        c = "0" if i == 0 else vr(S, 4)
        A(f"  v_mfma_f32_16x16x32_bf16 {vr(S,4)}, {vr(AF+4*i,4)}, {vr(Q+4*i,4)}, {c}")
    v_half(0)
    A(f"  v_max3_f32 {vr(vX)}, {vr(S)}, {vr(S+1)}, {vr(S+2)}")
    A(f"  v_max_f32 {vr(vX)}, {vr(vX)}, {vr(S+3)}")
    A(f"  v_mov_b32 {vr(vY)}, {vr(vX)}")
    A("  s_nop 1")
    A(f"  v_permlane32_swap_b32 {vr(vX)}, {vr(vY)}")
    A(f"  v_max_f32 {vr(vX)}, {vr(vX)}, {vr(vY)}")
    A(f"  v_mov_b32 {vr(vY)}, {vr(vX)}")
    A("  s_nop 1")
    A(f"  v_permlane16_swap_b32 {vr(vX)}, {vr(vY)}")
    A(f"  v_max_f32 {vr(vX)}, {vr(vX)}, {vr(vY)}")
    A(f"  v_mul_f32 {vr(vX)}, s{sScale}, {vr(vX)}")
    A(f"  v_max_f32 {vr(vMn)}, {vr(vM)}, {vr(vX)}")
    A(f"  v_sub_f32 {vr(vAl)}, {vr(vM)}, {vr(vMn)}")
    for r in range(4):
        A(f"  v_fma_f32 {vr(S+r)}, {vr(S+r)}, s{sScale}, -{vr(vMn)}")
    A(f"  v_exp_f32 {vr(vAl)}, {vr(vAl)}")
    for r in range(4):
        A(f"  v_exp_f32 {vr(S+r)}, {vr(S+r)}")
    A(f"  v_mov_b32 {vr(vM)}, {vr(vMn)}")
    A(f"  v_fma_f32 {vr(vL)}, {vr(vL)}, {vr(vAl)}, {vr(S)}")
    A(f"  v_add_f32 {vr(vX)}, {vr(S+1)}, {vr(S+2)}")
    A(f"  v_add_f32 {vr(vL)}, {vr(vL)}, {vr(S+3)}")
    A(f"  v_cvt_pk_bf16_f32 {vr(P)}, {vr(S)}, {vr(S+1)}")
    A(f"  v_cvt_pk_bf16_f32 {vr(P+1)}, {vr(S+2)}, {vr(S+3)}")
    A(f"  v_add_f32 {vr(vL)}, {vr(vL)}, {vr(vX)}")
    for i in range(16):
        A(f"  v_pk_mul_f32 {vr(O+2*i,2)}, {vr(O+2*i,2)}, {vr(vAl,2)} op_sel_hi:[1,0]")
    v_half(1)
    read_sc()
    A(f"  s_add_u32 s{sK}, s{sK}, {8192*NW}")
    A(f"  s_add_u32 s{sC}, s{sC}, {4096*NW}")
    for i in range(8):
        A(f"  v_mfma_f32_16x16x16_bf16 {vr(O+4*i,4)}, {vr(VA+2*i,2)}, {vr(P,2)}, {vr(O+4*i,4)}")
    A(f"  s_sub_u32 s{sT}, s{sT}, 1")
    A(f"  s_cmp_lg_u32 s{sT}, 0")
    A("  s_cbranch_scc1 L_loop")

    if stamps:
        A("  s_memrealtime s[62:63]")
    A(f"  v_mov_b32 {vr(vY)}, {vr(vL)}")
    A(f"  v_cmp_lt_u32 vcc, 7, {vr(vC)}")
    A(f"  v_and_b32 {vr(vX)}, 7, {vr(vC)}")
    A(f"  v_permlane32_swap_b32 {vr(vL)}, {vr(vY)}")
    A(f"  v_add_f32 {vr(vL)}, {vr(vL)}, {vr(vY)}")
    A(f"  v_mov_b32 {vr(vY)}, {vr(vL)}")
    A(f"  s_mul_i32 s54, s{sW}, {WREG}")
    A(f"  v_mul_u32_u24 {vr(vLw)}, {OROW}, {vr(vX)}")
    A(f"  v_permlane16_swap_b32 {vr(vL)}, {vr(vY)}")
    A(f"  v_add_f32 {vr(vL)}, {vr(vL)}, {vr(vY)}")
    A(f"  v_lshl_add_u32 {vr(vLr)}, {vr(vX)}, 3, s54")
    A(f"  v_lshl_add_u32 {vr(vLw)}, {vr(vG)}, 6, {vr(vLw)}")
    A(f"  v_lshrrev_b32 {vr(vX)}, 3, {vr(vC)}")
    A(f"  v_lshl_add_u32 {vr(vLw)}, {vr(vX)}, 8, {vr(vLw)}")
    A(f"  v_add_u32 {vr(vLw)}, s54, {vr(vLw)}")
    A("  s_waitcnt lgkmcnt(0)")
    A(f"  ds_write_b64 {vr(vLr)}, {vr(vM,2)} offset:{MLOFF}")
    for rho in range(4):
        for r in range(4):
            A(f"  v_cndmask_b32 {vr(G+4*rho+r)}, {vr(O+4*r+rho)}, {vr(O+16+4*r+rho)}, vcc")
        A(f"  ds_write_b128 {vr(vLw)}, {vr(G+4*rho,4)} offset:{16*rho}")
    A(f"  v_lshrrev_b32 {vr(vX)}, 5, v0")
    A(f"  v_and_b32 {vr(vY)}, 31, v0")
    A(f"  v_mul_u32_u24 {vr(vLw)}, {4*WREG}, {vr(vX)}")
    A(f"  s_mul_i32 s54, s{sW}, {OROW}")
    A(f"  v_lshl_add_u32 {vr(vLr)}, {vr(vY)}, 4, s54")
    A(f"  v_add_u32 {vr(vLr)}, {vr(vLr)}, {vr(vLw)}")
    A(f"  s_lshl_b32 s54, s{sW}, 3")
    A(f"  v_mov_b32 {vr(vSc)}, s54")
    A(f"  v_cmp_lt_u32 vcc, 31, v0")
    A("  s_waitcnt vmcnt(0) lgkmcnt(0)")
    A("  s_barrier")
    ML, MH, OP = K, K + 16, V
    for w in range(8):
        A(f"  ds_read_b64 {vr(ML+2*w,2)}, {vr(vSc)} offset:{MLOFF + w*WREG}")
    for w in range(4):
        A(f"  ds_read_b128 {vr(OP+4*w,4)}, {vr(vLr)} offset:{w*WREG}")
    A(f"  s_lshl_b32 s54, s2, 3")
    A(f"  s_add_u32 s54, s54, s{sW}")
    A(f"  s_mul_i32 s54, s54, {REC}")
    A(f"  v_lshlrev_b32 {vr(vKo)}, 4, v0")
    A("  s_mov_b32 s32, s30")
    A("  s_mov_b32 s33, s31")
    A(f"  s_mov_b32 s34, {NWG*8*REC}")
    A("  s_waitcnt lgkmcnt(4)")
    A(f"  v_max3_f32 {vr(vMn)}, {vr(ML)}, {vr(ML+2)}, {vr(ML+4)}")
    A(f"  v_max3_f32 {vr(vMn)}, {vr(vMn)}, {vr(ML+6)}, {vr(ML+8)}")
    A(f"  v_max3_f32 {vr(vMn)}, {vr(vMn)}, {vr(ML+10)}, {vr(ML+12)}")
    A(f"  v_max_f32 {vr(vMn)}, {vr(vMn)}, {vr(ML+14)}")
    for w in range(8):
        A(f"  v_sub_f32 {vr(ML+2*w)}, {vr(ML+2*w)}, {vr(vMn)}")
    for w in range(8):
        A(f"  v_exp_f32 {vr(ML+2*w)}, {vr(ML+2*w)}")
    A(f"  v_mul_f32 {vr(vL)}, {vr(ML)}, {vr(ML+1)}")
    for w in range(4):
        A(f"  v_cndmask_b32 {vr(MH+w)}, {vr(ML+2*w)}, {vr(ML+8+2*w)}, vcc")
    for w in range(1, 8):
        A(f"  v_fma_f32 {vr(vL)}, {vr(ML+2*w)}, {vr(ML+2*w+1)}, {vr(vL)}")
    A("  s_waitcnt lgkmcnt(0)")
    for r in range(4):
        A(f"  v_mul_f32 {vr(F+r)}, {vr(MH)}, {vr(OP+r)}")
    for w in range(1, 4):
        for r in range(4):
            A(f"  v_fma_f32 {vr(F+r)}, {vr(MH+w)}, {vr(OP+4*w+r)}, {vr(F+r)}")
    for r in range(4):
        A(f"  v_mov_b32 {vr(T+r)}, {vr(F+r)}")
    A(f"  v_cmp_eq_u32 vcc, 32, v0")
    A("  s_nop 0")
    for r in range(4):
        A(f"  v_permlane32_swap_b32 {vr(F+r)}, {vr(T+r)}")
    for r in range(4):
        A(f"  v_add_f32 {vr(F+r)}, {vr(F+r)}, {vr(T+r)}")
    A(f"  v_cndmask_b32 {vr(F)}, {vr(F)}, {vr(vMn)}, vcc")
    A(f"  v_cndmask_b32 {vr(F+1)}, {vr(F+1)}, {vr(vL)}, vcc")
    A("  s_mov_b32 exec_lo, -1")
    A("  s_mov_b32 exec_hi, 1")
    stpol = "sc0 sc1" if mode == "atomic" else ""
    A(f"  buffer_store_dwordx4 {vr(F,4)}, {vr(vKo)}, s[32:35], s54 offen {stpol}")
    A("  s_mov_b64 exec, -1")

    def combine(sHead, sWv, srd_ws, srd_out, vLane, base, ldpol):
        a, b, o, ml, t = base, base + 1, base + 4, base + 12, base + 20
        A(f"  s_lshl_b32 s54, s{sHead}, 5")
        A(f"  s_add_u32 s54, s54, s{sWv}")
        A(f"  s_mul_i32 s54, s54, {REC}")
        A(f"  v_lshrrev_b32 {vr(a)}, 5, {vr(vLane)}")
        A(f"  v_mul_u32_u24 {vr(a)}, {16*REC}, {vr(a)}")
        A(f"  v_and_b32 {vr(b)}, 31, {vr(vLane)}")
        A(f"  v_lshl_add_u32 {vr(a)}, {vr(b)}, 4, {vr(a)}")
        A(f"  s_add_u32 s55, s54, {8*REC}")
        A(f"  buffer_load_dwordx4 {vr(o,4)}, {vr(a)}, {srd_ws}, s54 offen {ldpol}")
        A(f"  buffer_load_dwordx4 {vr(o+4,4)}, {vr(a)}, {srd_ws}, s55 offen {ldpol}")
        for s in range(4):
            A(f"  buffer_load_dwordx2 {vr(ml+2*s,2)}, off, {srd_ws}, s54 offset:512 {ldpol}")
            if s < 3:
                A(f"  s_add_u32 s54, s54, {8*REC}")
        A(f"  s_lshl_b32 s54, s{sHead}, 3")
        A(f"  s_add_u32 s54, s54, s{sWv}")
        A(f"  s_lshl_b32 s54, s54, 8")
        A(f"  v_lshlrev_b32 {vr(b)}, 3, {vr(b)}")
        A(f"  v_cmp_lt_u32 vcc, 31, {vr(vLane)}")
        A("  s_waitcnt vmcnt(0)")
        A(f"  v_max3_f32 {vr(a)}, {vr(ml)}, {vr(ml+2)}, {vr(ml+4)}")
        A(f"  v_max_f32 {vr(a)}, {vr(a)}, {vr(ml+6)}")
        for s in range(4):
            A(f"  v_sub_f32 {vr(ml+2*s)}, {vr(ml+2*s)}, {vr(a)}")
        for s in range(4):
            A(f"  v_exp_f32 {vr(ml+2*s)}, {vr(ml+2*s)}")
        A("  s_nop 0")
        A(f"  v_mul_f32 {vr(a)}, {vr(ml)}, {vr(ml+1)}")
        for s in range(1, 4):
            A(f"  v_fma_f32 {vr(a)}, {vr(ml+2*s)}, {vr(ml+2*s+1)}, {vr(a)}")
        A(f"  v_cndmask_b32 {vr(ml)}, {vr(ml)}, {vr(ml+4)}, vcc")
        A(f"  v_cndmask_b32 {vr(ml+2)}, {vr(ml+2)}, {vr(ml+6)}, vcc")
        A(f"  v_rcp_f32 {vr(a)}, {vr(a)}")
        for r in range(4):
            A(f"  v_mul_f32 {vr(o+r)}, {vr(ml)}, {vr(o+r)}")
        for r in range(4):
            A(f"  v_fma_f32 {vr(o+r)}, {vr(ml+2)}, {vr(o+4+r)}, {vr(o+r)}")
        for r in range(4):
            A(f"  v_mov_b32 {vr(t+r)}, {vr(o+r)}")
        A("  s_nop 1")
        for r in range(4):
            A(f"  v_permlane32_swap_b32 {vr(o+r)}, {vr(t+r)}")
        for r in range(4):
            A(f"  v_add_f32 {vr(o+r)}, {vr(o+r)}, {vr(t+r)}")
        for r in range(4):
            A(f"  v_mul_f32 {vr(o+r)}, {vr(a)}, {vr(o+r)}")
        A(f"  v_cvt_pk_bf16_f32 {vr(t)}, {vr(o)}, {vr(o+1)}")
        A(f"  v_cvt_pk_bf16_f32 {vr(t+1)}, {vr(o+2)}, {vr(o+3)}")
        A("  s_mov_b32 exec_hi, 0")
        A(f"  buffer_store_dwordx2 {vr(t,2)}, {vr(b)}, {srd_out}, s54 offen")

    if mode == "atomic":
        A("  s_mov_b32 s36, s26")
        A("  s_mov_b32 s37, s27")
        A(f"  s_mov_b32 s38, {64*8*128*2}")
        A("  s_lshr_b32 s56, s2, 2")
        A(f"  v_mov_b32 {vr(vX)}, {FLAG}")
        A("  s_waitcnt vmcnt(0)")
        A("  s_barrier")
        A(f"  s_cmp_lg_u32 s{sW}, 0")
        A("  s_cbranch_scc1 L_wait")
        A("  s_lshl_b32 s54, s56, 2")
        A(f"  v_mov_b32 {vr(vY)}, s54")
        A(f"  v_mov_b32 {vr(vMn)}, 1")
        A("  s_mov_b64 exec, 1")
        A(f"  global_atomic_add {vr(vMn)}, {vr(vY)}, {vr(vMn)}, s[28:29] sc0 sc1")
        A("  s_waitcnt vmcnt(0)")
        A(f"  ds_write_b32 {vr(vX)}, {vr(vMn)}")
        A("  s_mov_b64 exec, -1")
        A("  s_waitcnt lgkmcnt(0)")
        A("L_wait:")
        A("  s_barrier")
        A(f"  ds_read_b32 {vr(vY)}, {vr(vX)}")
        A("  s_waitcnt lgkmcnt(0)")
        A(f"  v_readfirstlane_b32 s57, {vr(vY)}")
        A("  s_nop 3")
        A("  s_cmp_lg_u32 s57, 3")
        A("  s_cbranch_scc1 L_done")
        combine(56, sW, "s[32:35]", "s[36:39]", 0, K, "sc0 sc1")
        A("L_done:")
    if stamps:
        A("  s_mov_b64 exec, -1")
        A("  s_waitcnt vmcnt(0)")
        A("  s_memrealtime s[64:65]")
        A("  s_waitcnt lgkmcnt(0)")
        A(f"  s_lshl_b32 s54, s2, 3")
        A(f"  s_add_u32 s54, s54, s{sW}")
        A(f"  s_lshl_b32 s54, s54, 4")
        A(f"  s_add_u32 s54, s54, {16<<20}")
        A(f"  s_mov_b32 s34, {32<<20}")
        A(f"  v_mov_b32 {vr(F)}, s60")
        A(f"  v_mov_b32 {vr(F+1)}, s62")
        A(f"  v_mov_b32 {vr(F+2)}, s64")
        A(f"  v_mov_b32 {vr(F+3)}, s57")
        A("  s_mov_b64 exec, 1")
        A(f"  buffer_store_dwordx4 {vr(F,4)}, off, s[32:35], s54")
    A("L_end:")
    A("  s_endpgm")

    def kd(name, nv, ns):
        A(f".amdhsa_kernel {name}")
        A(f"  .amdhsa_next_free_vgpr {nv}")
        A(f"  .amdhsa_next_free_sgpr {ns}")
        A(f"  .amdhsa_accum_offset {(nv+3)//4*4}")
        A("  .amdhsa_group_segment_fixed_size 0")
        A("  .amdhsa_kernarg_size 112")
        A("  .amdhsa_user_sgpr_count 2")
        A("  .amdhsa_user_sgpr_kernarg_segment_ptr 1")
        A("  .amdhsa_system_sgpr_workgroup_id_x 1")
        A("  .amdhsa_float_denorm_mode_32 3")
        A(".end_amdhsa_kernel")

    if mode != "atomic":
        A(".globl combine_kernel")
        A(".p2align 8")
        A(".type combine_kernel,@function")
        A("combine_kernel:")
        A("  s_cmp_ge_u32 s2, 64")
        A("  s_cbranch_scc1 L_cend")
        A("  s_load_dwordx2 s[36:37], s[0:1], 88")
        A("  s_load_dwordx2 s[32:33], s[0:1], 104")
        A("  v_lshrrev_b32 v1, 6, v0")
        A("  v_and_b32 v0, 63, v0")
        A("  v_readfirstlane_b32 s3, v1")
        A(f"  s_mov_b32 s34, {NWG*8*REC}")
        A("  s_mov_b32 s35, 0x20000")
        A(f"  s_mov_b32 s38, {64*8*128*2}")
        A("  s_mov_b32 s39, 0x20000")
        A("  s_waitcnt lgkmcnt(0)")
        combine(2, 3, "s[32:35]", "s[36:39]", 0, 4, "")
        A("L_cend:")
        A("  s_endpgm")
    A('.section .rodata,"a"')
    A(".p2align 6")
    kd(kname, NV, 72)
    if mode != "atomic":
        A(".p2align 6")
        kd("combine_kernel", 32, 72)
    return "\n".join(L) + "\n"

if __name__ == "__main__":
    out = sys.argv[1]
    kw = dict(a.split("=", 1) for a in sys.argv[2:])
    for k in list(kw):
        if kw[k] in ("True", "False"):
            kw[k] = kw[k] == "True"
    open(out, "w").write(gen(**kw))
```

```python
import sys, struct, math

NAME = "standalone__kv_cache_quant_pre_rope_vs_post_rope__sampling"
HEADER = open("cdna_kernels/%s.s.ref" % NAME).read().split("; Override launch")[0]

def f32(x):
    return "0x%08x" % struct.unpack("<I", struct.pack("<f", x))[0]

class Regs:
    def __init__(self, start):
        self.n = start
    def alloc(self, cnt, align=1):
        self.n = (self.n + align - 1) // align * align
        r = self.n
        self.n += cnt
        return r

def vr(a, n=1):
    return f"v{a}" if n == 1 else f"v[{a}:{a+n-1}]"

def gen(mode="atomic", kvpol="nt", vpol=None, cspol="nt", smallpol="", stamps=False):
    if vpol is None:
        vpol = kvpol
    NW = 8
    NWG = 256
    NT = 1024 // 16 // NW
    ROW = 272
    WREG = 16 * ROW
    SCB = NW * WREG
    FLAG = SCB + NW * NT * 256
    LDS = FLAG + 256
    OROW = 528
    MLOFF = 8 * OROW
    REC = 640
    kname = NAME + "_kernel"
    L = []
    A = L.append
    A(HEADER.rstrip("\n"))
    if mode == "atomic":
        A(f"; @launch grid=({NWG},1,1) block=({NW*64},1,1) lds={LDS}")
    else:
        A(f"; @launch kernel={kname} grid=({NWG},1,1) block=({NW*64},1,1) lds={LDS}")
        A(f"; @launch kernel=combine_kernel grid=(64,1,1) block=(512,1,1) lds=0")
    A('.amdgcn_target "amdgcn-amd-amdhsa--gfx950"')
    A(".text")
    A(f".globl {kname}")
    A(".p2align 8")
    A(f".type {kname},@function")
    A(f"{kname}:")

    R = Regs(1)
    vC, vG = R.alloc(1), R.alloc(1)
    vKo, vCo, vLw, vLr, vSc = (R.alloc(1) for _ in range(5))
    vM, vL = R.alloc(2, 2), None
    vL = vM + 1
    vAl = R.alloc(2, 2)
    vMn = R.alloc(1)
    vX, vY = R.alloc(1), R.alloc(1)
    K = R.alloc(32, 4)
    CS = R.alloc(32, 4)
    V = R.alloc(32, 4)
    SC = R.alloc(16, 4)
    Q = R.alloc(16, 4)
    O = R.alloc(32, 4)
    F = R.alloc(8, 4)
    T = R.alloc(8, 4)
    W = R.alloc(4, 4)
    G = R.alloc(16, 4)
    VA = R.alloc(16, 4)
    AF = R.alloc(16, 4)
    S = R.alloc(4, 4)
    P = R.alloc(2, 2)
    NV = R.n
    sK, sC, sT, sW = 48, 49, 50, 3
    sSelLo, sSelHi, sScale = 51, 52, 53

    A(f"  s_cmp_ge_u32 s2, {NWG}")
    A("  s_cbranch_scc1 L_end")
    A("  s_load_dwordx16 s[4:19], s[0:1], 0")
    A("  s_load_dwordx8 s[20:27], s[0:1], 64")
    A("  s_load_dwordx4 s[28:31], s[0:1], 96")
    if stamps:
        A("  s_memrealtime s[60:61]")
    A(f"  v_lshrrev_b32 {vr(vX)}, 6, v0")
    A("  v_and_b32 v0, 63, v0")
    A(f"  v_readfirstlane_b32 s{sW}, {vr(vX)}")
    A(f"  v_and_b32 {vr(vC)}, 15, v0")
    A(f"  v_lshrrev_b32 {vr(vG)}, 4, v0")
    A(f"  v_lshlrev_b32 {vr(vKo)}, 4, {vr(vC)}")
    A(f"  v_lshl_add_u32 {vr(vKo)}, {vr(vG)}, 11, {vr(vKo)}")
    A(f"  v_lshrrev_b32 {vr(vCo)}, 1, {vr(vKo)}")
    A(f"  s_lshl_b32 s{sK}, s2, 19")
    A(f"  s_lshl_b32 s54, s{sW}, 13")
    A(f"  s_add_u32 s{sK}, s{sK}, s54")
    A(f"  s_and_b32 s{sC}, s{sK}, {(1<<21)-1}")
    A(f"  s_lshr_b32 s{sC}, s{sC}, 1")
    A(f"  v_lshrrev_b32 {vr(vX)}, 3, v0")
    A(f"  v_lshlrev_b32 {vr(vX)}, 8, {vr(vX)}")
    A(f"  v_and_b32 {vr(vY)}, 7, v0")
    A(f"  v_lshl_add_u32 {vr(vX)}, {vr(vY)}, 2, {vr(vX)}")
    A(f"  s_lshr_b32 s54, s{sK}, 8")
    A(f"  v_add_u32 {vr(vX)}, s54, {vr(vX)}")
    A(f"  v_lshlrev_b32 {vr(vY)}, 8, {vr(vY)}")
    A(f"  v_lshl_add_u32 {vr(vY)}, {vr(vG)}, 5, {vr(vY)}")
    A(f"  s_lshr_b32 s55, s2, 2")
    A(f"  s_lshl_b32 s55, s55, 11")
    A("  s_mov_b32 s34, 0x8000000")
    A("  s_mov_b32 s35, 0x20000")
    A("  s_mov_b32 s38, 0x8000000")
    A("  s_mov_b32 s39, 0x20000")
    A("  s_mov_b32 s42, 0x100000")
    A("  s_mov_b32 s43, 0x20000")
    A("  s_mov_b32 s46, 0x100000")
    A("  s_mov_b32 s47, 0x20000")
    A("  s_waitcnt lgkmcnt(0)")
    A("  s_add_u32 s4, s4, s55")
    A("  s_addc_u32 s5, s5, 0")
    A("  s_mov_b32 s32, s6")
    A("  s_mov_b32 s33, s7")
    A("  s_mov_b32 s36, s12")
    A("  s_mov_b32 s37, s13")
    A("  s_mov_b32 s40, s22")
    A("  s_mov_b32 s41, s23")
    A("  s_mov_b32 s44, s24")
    A("  s_mov_b32 s45, s25")
    QR, QC, QS = O, O + 16, G
    SR = AF
    for i, p in enumerate((8, 10, 14, 16)):
        A(f"  global_load_dword {vr(SR+i)}, {vr(vX)}, s[{p}:{p+1}] {smallpol}")
    for base, p in ((QR, 4), (QC, 18), (QS, 20)):
        for h in range(2):
            for u in range(2):
                A(f"  global_load_dwordx4 {vr(base+8*h+4*u,4)}, {vr(vY)}, s[{p}:{p+1}] offset:{128*h+16*u} {smallpol}")

    def load_k(j):
        for h in range(2):
            A(f"  buffer_load_dwordx4 {vr(K+8*j+4*h,4)}, {vr(vKo)}, s[32:35], s{sK} offen offset:{512*j+256*h} {kvpol}")
        for h in range(2):
            A(f"  buffer_load_dwordx2 {vr(CS+8*j+2*h,2)}, {vr(vCo)}, s[40:43], s{sC} offen offset:{256*j+128*h} {cspol}")
        for h in range(2):
            A(f"  buffer_load_dwordx2 {vr(CS+8*j+4+2*h,2)}, {vr(vCo)}, s[44:47], s{sC} offen offset:{256*j+128*h} {cspol}")
    def load_v(jp):
        for j in (2*jp, 2*jp+1):
            for h in range(2):
                A(f"  buffer_load_dwordx4 {vr(V+8*j+4*h,4)}, {vr(vKo)}, s[36:39], s{sK} offen offset:{512*j+256*h} {vpol}")
    for j in range(4):
        load_k(j)
    load_v(0); load_v(1)
    A(f"  s_add_u32 s{sK}, s{sK}, {8192*NW}")
    A(f"  s_add_u32 s{sC}, s{sC}, {4096*NW}")

    A(f"  s_mov_b32 s{sSelLo}, 0x05040100")
    A(f"  s_mov_b32 s{sSelHi}, 0x07060302")
    A(f"  s_mov_b32 s{sScale}, {f32(math.log2(math.e) / math.sqrt(128.0))}")
    A(f"  s_mul_i32 s54, s{sW}, {WREG}")
    A(f"  v_mul_u32_u24 {vr(vLw)}, {4*ROW}, {vr(vG)}")
    A(f"  v_lshl_add_u32 {vr(vLw)}, {vr(vC)}, 4, {vr(vLw)}")
    A(f"  v_add_u32 {vr(vLw)}, s54, {vr(vLw)}")
    A(f"  v_mul_u32_u24 {vr(vLr)}, {ROW}, {vr(vC)}")
    A(f"  v_lshl_add_u32 {vr(vLr)}, {vr(vG)}, 6, {vr(vLr)}")
    A(f"  v_add_u32 {vr(vLr)}, s54, {vr(vLr)}")
    A(f"  s_mul_i32 s54, s{sW}, {NT*256}")
    A(f"  s_add_u32 s54, s54, {SCB}")
    A(f"  v_lshlrev_b32 {vr(vSc)}, 6, {vr(vG)}")
    A(f"  v_add_u32 {vr(vSc)}, s54, {vr(vSc)}")
    A(f"  v_lshlrev_b32 {vr(vX)}, 5, v0")
    A(f"  v_add_u32 {vr(vX)}, s54, {vr(vX)}")
    A("  s_waitcnt vmcnt(44)")
    for e in range(2):
        for i in range(4):
            if e == 0:
                A(f"  v_lshlrev_b32 {vr(F+i)}, 16, {vr(SR+i)}")
            else:
                A(f"  v_and_b32 {vr(F+4+i)}, 0xffff0000, {vr(SR+i)}")
    for e in range(2):
        A(f"  v_mul_f32 {vr(F+4*e+1)}, {vr(F+4*e)}, {vr(F+4*e+1)}")
        A(f"  v_mul_f32 {vr(F+4*e+3)}, {vr(F+4*e+2)}, {vr(F+4*e+3)}")
        A(f"  v_xor_b32 {vr(F+4*e+1)}, 0x80000000, {vr(F+4*e+1)}")
        A(f"  v_xor_b32 {vr(F+4*e+3)}, 0x80000000, {vr(F+4*e+3)}")
    A(f"  ds_write_b128 {vr(vX)}, {vr(F,4)}")
    A(f"  ds_write_b128 {vr(vX)}, {vr(F+4,4)} offset:16")
    A("  s_waitcnt lgkmcnt(0)")
    def read_sc():
        for j in range(4):
            A(f"  ds_read_b128 {vr(SC+4*j,4)}, {vr(vSc)} offset:{16*j}")
        A(f"  v_add_u32 {vr(vSc)}, 256, {vr(vSc)}")
    read_sc()
    A("  s_waitcnt vmcnt(32)")
    for i in range(4):
        for u in range(2):
            p = 2*i + u
            for e, sel in enumerate((sSelLo, sSelHi)):
                r = 2*u + e
                A(f"  v_perm_b32 {vr(F+r)}, {vr(QR+8+p)}, {vr(QR+p)}, s{sel}")
                A(f"  v_perm_b32 {vr(T+r)}, {vr(QS+p)}, {vr(QC+p)}, s{sel}")
                A(f"  v_perm_b32 {vr(T+4+r)}, {vr(QC+8+p)}, {vr(QS+8+p)}, s{sel}")
        for r in range(4):
            A(f"  v_dot2_f32_bf16 {vr(T+r)}, {vr(F+r)}, {vr(T+r)}, 0 neg_hi:[0,1,0]")
        for r in range(4):
            A(f"  v_dot2_f32_bf16 {vr(T+4+r)}, {vr(F+r)}, {vr(T+4+r)}, 0")
        A(f"  v_cvt_pk_bf16_f32 {vr(Q+4*i)}, {vr(T)}, {vr(T+1)}")
        A(f"  v_cvt_pk_bf16_f32 {vr(Q+4*i+1)}, {vr(T+2)}, {vr(T+3)}")
        A("  s_nop 0")
        A(f"  v_cvt_pk_bf16_f32 {vr(Q+4*i+2)}, {vr(T+4)}, {vr(T+5)}")
        A(f"  v_cvt_pk_bf16_f32 {vr(Q+4*i+3)}, {vr(T+6)}, {vr(T+7)}")
    for i in range(32):
        A(f"  v_mov_b32 {vr(O+i)}, 0")
    A(f"  v_mov_b32 {vr(vM)}, {f32(-3.0e38)}")
    A(f"  v_mov_b32 {vr(vL)}, 0")
    A(f"  s_mov_b32 s{sT}, {NT}")

    A("L_loop:")
    A(f"  s_cmp_eq_u32 s{sT}, 1")
    A("  s_cselect_b32 s34, 0, s34")
    A("  s_cselect_b32 s38, 0, s38")
    A("  s_cselect_b32 s42, 0, s42")
    A("  s_cselect_b32 s46, 0, s46")
    for j in range(4):
        kj, cj = K + 8*j, CS + 8*j
        A("  s_waitcnt vmcnt(26)" + (" lgkmcnt(0)" if j == 0 else ""))
        for i in range(8):
            A(f"  v_cvt_f32_i32 {vr(F+i)}, {vr(kj+i)}")
        for r in range(4):
            sel = sSelLo if r % 2 == 0 else sSelHi
            A(f"  v_perm_b32 {vr(T+r)}, {vr(cj+4+r//2)}, {vr(cj+r//2)}, s{sel}")
        for r in range(4):
            sel = sSelLo if r % 2 == 0 else sSelHi
            A(f"  v_perm_b32 {vr(T+4+r)}, {vr(cj+2+r//2)}, {vr(cj+6+r//2)}, s{sel}")
        load_k(j)
        for i in range(4):
            A(f"  v_pk_fma_f32 {vr(F+2*i,2)}, {vr(F+2*i,2)}, {vr(SC+4*j,2)}, {vr(SC+4*j,2)} op_sel:[0,0,1] op_sel_hi:[1,0,1]")
        for r in range(4):
            A(f"  v_cvt_pk_bf16_f32 {vr(F+r)}, {vr(F+r)}, {vr(F+4+r)}")
        for r in range(4):
            A(f"  v_dot2_f32_bf16 {vr(T+r)}, {vr(F+r)}, {vr(T+r)}, 0 neg_hi:[0,1,0]")
        for r in range(4):
            A(f"  v_dot2_f32_bf16 {vr(T+4+r)}, {vr(F+r)}, {vr(T+4+r)}, 0")
        A(f"  v_cvt_pk_bf16_f32 {vr(W)}, {vr(T)}, {vr(T+1)}")
        A(f"  v_cvt_pk_bf16_f32 {vr(W+1)}, {vr(T+2)}, {vr(T+3)}")
        A("  s_nop 0")
        A(f"  v_cvt_pk_bf16_f32 {vr(W+2)}, {vr(T+4)}, {vr(T+5)}")
        A(f"  v_cvt_pk_bf16_f32 {vr(W+3)}, {vr(T+6)}, {vr(T+7)}")
        A(f"  ds_write_b128 {vr(vLw)}, {vr(W,4)} offset:{ROW*j}")
    for i in range(4):
        A(f"  ds_read_b128 {vr(AF+4*i,4)}, {vr(vLr)} offset:{16*i}")
    def v_half(jp):
        A("  s_waitcnt vmcnt(28)")
        for i in range(16):
            A(f"  v_cvt_f32_i32 {vr(G+i)}, {vr(V+16*jp+i)}")
        load_v(jp)
        for e in range(2):
            j = 2*jp + e
            for i in range(4):
                A(f"  v_pk_fma_f32 {vr(G+8*e+2*i,2)}, {vr(G+8*e+2*i,2)}, {vr(SC+4*j+2,2)}, {vr(SC+4*j+2,2)} op_sel:[0,0,1] op_sel_hi:[1,0,1]")
        for i in range(8):
            A(f"  v_cvt_pk_bf16_f32 {vr(VA+2*i+jp)}, {vr(G+i)}, {vr(G+8+i)}")
    A("  s_waitcnt lgkmcnt(0)")
    for i in range(4):
        c = "0" if i == 0 else vr(S, 4)
        A(f"  v_mfma_f32_16x16x32_bf16 {vr(S,4)}, {vr(AF+4*i,4)}, {vr(Q+4*i,4)}, {c}")
    v_half(0)
    A(f"  v_max3_f32 {vr(vX)}, {vr(S)}, {vr(S+1)}, {vr(S+2)}")
    A(f"  v_max_f32 {vr(vX)}, {vr(vX)}, {vr(S+3)}")
    A(f"  v_mov_b32 {vr(vY)}, {vr(vX)}")
    A("  s_nop 1")
    A(f"  v_permlane32_swap_b32 {vr(vX)}, {vr(vY)}")
    A(f"  v_max_f32 {vr(vX)}, {vr(vX)}, {vr(vY)}")
    A(f"  v_mov_b32 {vr(vY)}, {vr(vX)}")
    A("  s_nop 1")
    A(f"  v_permlane16_swap_b32 {vr(vX)}, {vr(vY)}")
    A(f"  v_max_f32 {vr(vX)}, {vr(vX)}, {vr(vY)}")
    A(f"  v_mul_f32 {vr(vX)}, s{sScale}, {vr(vX)}")
    A(f"  v_max_f32 {vr(vMn)}, {vr(vM)}, {vr(vX)}")
    A(f"  v_sub_f32 {vr(vAl)}, {vr(vM)}, {vr(vMn)}")
    for r in range(4):
        A(f"  v_fma_f32 {vr(S+r)}, {vr(S+r)}, s{sScale}, -{vr(vMn)}")
    A(f"  v_exp_f32 {vr(vAl)}, {vr(vAl)}")
    for r in range(4):
        A(f"  v_exp_f32 {vr(S+r)}, {vr(S+r)}")
    A(f"  v_mov_b32 {vr(vM)}, {vr(vMn)}")
    A(f"  v_fma_f32 {vr(vL)}, {vr(vL)}, {vr(vAl)}, {vr(S)}")
    A(f"  v_add_f32 {vr(vX)}, {vr(S+1)}, {vr(S+2)}")
    A(f"  v_add_f32 {vr(vL)}, {vr(vL)}, {vr(S+3)}")
    A(f"  v_cvt_pk_bf16_f32 {vr(P)}, {vr(S)}, {vr(S+1)}")
    A(f"  v_cvt_pk_bf16_f32 {vr(P+1)}, {vr(S+2)}, {vr(S+3)}")
    A(f"  v_add_f32 {vr(vL)}, {vr(vL)}, {vr(vX)}")
    for i in range(16):
        A(f"  v_pk_mul_f32 {vr(O+2*i,2)}, {vr(O+2*i,2)}, {vr(vAl,2)} op_sel_hi:[1,0]")
    v_half(1)
    read_sc()
    A(f"  s_add_u32 s{sK}, s{sK}, {8192*NW}")
    A(f"  s_add_u32 s{sC}, s{sC}, {4096*NW}")
    for i in range(8):
        A(f"  v_mfma_f32_16x16x16_bf16 {vr(O+4*i,4)}, {vr(VA+2*i,2)}, {vr(P,2)}, {vr(O+4*i,4)}")
    A(f"  s_sub_u32 s{sT}, s{sT}, 1")
    A(f"  s_cmp_lg_u32 s{sT}, 0")
    A("  s_cbranch_scc1 L_loop")

    if stamps:
        A("  s_memrealtime s[62:63]")
    A(f"  v_mov_b32 {vr(vY)}, {vr(vL)}")
    A(f"  v_cmp_lt_u32 vcc, 7, {vr(vC)}")
    A(f"  v_and_b32 {vr(vX)}, 7, {vr(vC)}")
    A(f"  v_permlane32_swap_b32 {vr(vL)}, {vr(vY)}")
    A(f"  v_add_f32 {vr(vL)}, {vr(vL)}, {vr(vY)}")
    A(f"  v_mov_b32 {vr(vY)}, {vr(vL)}")
    A(f"  s_mul_i32 s54, s{sW}, {WREG}")
    A(f"  v_mul_u32_u24 {vr(vLw)}, {OROW}, {vr(vX)}")
    A(f"  v_permlane16_swap_b32 {vr(vL)}, {vr(vY)}")
    A(f"  v_add_f32 {vr(vL)}, {vr(vL)}, {vr(vY)}")
    A(f"  v_lshl_add_u32 {vr(vLr)}, {vr(vX)}, 3, s54")
    A(f"  v_lshl_add_u32 {vr(vLw)}, {vr(vG)}, 6, {vr(vLw)}")
    A(f"  v_lshrrev_b32 {vr(vX)}, 3, {vr(vC)}")
    A(f"  v_lshl_add_u32 {vr(vLw)}, {vr(vX)}, 8, {vr(vLw)}")
    A(f"  v_add_u32 {vr(vLw)}, s54, {vr(vLw)}")
    A("  s_waitcnt lgkmcnt(0)")
    A(f"  ds_write_b64 {vr(vLr)}, {vr(vM,2)} offset:{MLOFF}")
    for rho in range(4):
        for r in range(4):
            A(f"  v_cndmask_b32 {vr(G+4*rho+r)}, {vr(O+4*r+rho)}, {vr(O+16+4*r+rho)}, vcc")
        A(f"  ds_write_b128 {vr(vLw)}, {vr(G+4*rho,4)} offset:{16*rho}")
    A(f"  v_lshrrev_b32 {vr(vX)}, 5, v0")
    A(f"  v_and_b32 {vr(vY)}, 31, v0")
    A(f"  v_mul_u32_u24 {vr(vLw)}, {4*WREG}, {vr(vX)}")
    A(f"  s_mul_i32 s54, s{sW}, {OROW}")
    A(f"  v_lshl_add_u32 {vr(vLr)}, {vr(vY)}, 4, s54")
    A(f"  v_add_u32 {vr(vLr)}, {vr(vLr)}, {vr(vLw)}")
    A(f"  s_lshl_b32 s54, s{sW}, 3")
    A(f"  v_mov_b32 {vr(vSc)}, s54")
    A(f"  v_cmp_lt_u32 vcc, 31, v0")
    A("  s_waitcnt vmcnt(0) lgkmcnt(0)")
    A("  s_barrier")
    ML, MH, OP = K, K + 16, V
    for w in range(8):
        A(f"  ds_read_b64 {vr(ML+2*w,2)}, {vr(vSc)} offset:{MLOFF + w*WREG}")
    for w in range(4):
        A(f"  ds_read_b128 {vr(OP+4*w,4)}, {vr(vLr)} offset:{w*WREG}")
    A(f"  s_lshl_b32 s54, s2, 3")
    A(f"  s_add_u32 s54, s54, s{sW}")
    A(f"  s_mul_i32 s54, s54, {REC}")
    A(f"  v_lshlrev_b32 {vr(vKo)}, 4, v0")
    A("  s_mov_b32 s32, s30")
    A("  s_mov_b32 s33, s31")
    A(f"  s_mov_b32 s34, {NWG*8*REC}")
    A("  s_waitcnt lgkmcnt(4)")
    A(f"  v_max3_f32 {vr(vMn)}, {vr(ML)}, {vr(ML+2)}, {vr(ML+4)}")
    A(f"  v_max3_f32 {vr(vMn)}, {vr(vMn)}, {vr(ML+6)}, {vr(ML+8)}")
    A(f"  v_max3_f32 {vr(vMn)}, {vr(vMn)}, {vr(ML+10)}, {vr(ML+12)}")
    A(f"  v_max_f32 {vr(vMn)}, {vr(vMn)}, {vr(ML+14)}")
    for w in range(8):
        A(f"  v_sub_f32 {vr(ML+2*w)}, {vr(ML+2*w)}, {vr(vMn)}")
    for w in range(8):
        A(f"  v_exp_f32 {vr(ML+2*w)}, {vr(ML+2*w)}")
    A(f"  v_mul_f32 {vr(vL)}, {vr(ML)}, {vr(ML+1)}")
    for w in range(4):
        A(f"  v_cndmask_b32 {vr(MH+w)}, {vr(ML+2*w)}, {vr(ML+8+2*w)}, vcc")
    for w in range(1, 8):
        A(f"  v_fma_f32 {vr(vL)}, {vr(ML+2*w)}, {vr(ML+2*w+1)}, {vr(vL)}")
    A("  s_waitcnt lgkmcnt(0)")
    for r in range(4):
        A(f"  v_mul_f32 {vr(F+r)}, {vr(MH)}, {vr(OP+r)}")
    for w in range(1, 4):
        for r in range(4):
            A(f"  v_fma_f32 {vr(F+r)}, {vr(MH+w)}, {vr(OP+4*w+r)}, {vr(F+r)}")
    for r in range(4):
        A(f"  v_mov_b32 {vr(T+r)}, {vr(F+r)}")
    A(f"  v_cmp_eq_u32 vcc, 32, v0")
    A("  s_nop 0")
    for r in range(4):
        A(f"  v_permlane32_swap_b32 {vr(F+r)}, {vr(T+r)}")
    for r in range(4):
        A(f"  v_add_f32 {vr(F+r)}, {vr(F+r)}, {vr(T+r)}")
    A(f"  v_cndmask_b32 {vr(F)}, {vr(F)}, {vr(vMn)}, vcc")
    A(f"  v_cndmask_b32 {vr(F+1)}, {vr(F+1)}, {vr(vL)}, vcc")
    A("  s_mov_b32 exec_lo, -1")
    A("  s_mov_b32 exec_hi, 1")
    stpol = "sc0 sc1" if mode == "atomic" else ""
    A(f"  buffer_store_dwordx4 {vr(F,4)}, {vr(vKo)}, s[32:35], s54 offen {stpol}")
    A("  s_mov_b64 exec, -1")

    def combine(sHead, sWv, srd_ws, srd_out, vLane, base, ldpol):
        a, b, o, ml, t = base, base + 1, base + 4, base + 12, base + 20
        A(f"  s_lshl_b32 s54, s{sHead}, 5")
        A(f"  s_add_u32 s54, s54, s{sWv}")
        A(f"  s_mul_i32 s54, s54, {REC}")
        A(f"  v_lshrrev_b32 {vr(a)}, 5, {vr(vLane)}")
        A(f"  v_mul_u32_u24 {vr(a)}, {16*REC}, {vr(a)}")
        A(f"  v_and_b32 {vr(b)}, 31, {vr(vLane)}")
        A(f"  v_lshl_add_u32 {vr(a)}, {vr(b)}, 4, {vr(a)}")
        A(f"  s_add_u32 s55, s54, {8*REC}")
        A(f"  buffer_load_dwordx4 {vr(o,4)}, {vr(a)}, {srd_ws}, s54 offen {ldpol}")
        A(f"  buffer_load_dwordx4 {vr(o+4,4)}, {vr(a)}, {srd_ws}, s55 offen {ldpol}")
        for s in range(4):
            A(f"  buffer_load_dwordx2 {vr(ml+2*s,2)}, off, {srd_ws}, s54 offset:512 {ldpol}")
            if s < 3:
                A(f"  s_add_u32 s54, s54, {8*REC}")
        A(f"  s_lshl_b32 s54, s{sHead}, 3")
        A(f"  s_add_u32 s54, s54, s{sWv}")
        A(f"  s_lshl_b32 s54, s54, 8")
        A(f"  v_lshlrev_b32 {vr(b)}, 3, {vr(b)}")
        A(f"  v_cmp_lt_u32 vcc, 31, {vr(vLane)}")
        A("  s_waitcnt vmcnt(0)")
        A(f"  v_max3_f32 {vr(a)}, {vr(ml)}, {vr(ml+2)}, {vr(ml+4)}")
        A(f"  v_max_f32 {vr(a)}, {vr(a)}, {vr(ml+6)}")
        for s in range(4):
            A(f"  v_sub_f32 {vr(ml+2*s)}, {vr(ml+2*s)}, {vr(a)}")
        for s in range(4):
            A(f"  v_exp_f32 {vr(ml+2*s)}, {vr(ml+2*s)}")
        A("  s_nop 0")
        A(f"  v_mul_f32 {vr(a)}, {vr(ml)}, {vr(ml+1)}")
        for s in range(1, 4):
            A(f"  v_fma_f32 {vr(a)}, {vr(ml+2*s)}, {vr(ml+2*s+1)}, {vr(a)}")
        A(f"  v_cndmask_b32 {vr(ml)}, {vr(ml)}, {vr(ml+4)}, vcc")
        A(f"  v_cndmask_b32 {vr(ml+2)}, {vr(ml+2)}, {vr(ml+6)}, vcc")
        A(f"  v_rcp_f32 {vr(a)}, {vr(a)}")
        for r in range(4):
            A(f"  v_mul_f32 {vr(o+r)}, {vr(ml)}, {vr(o+r)}")
        for r in range(4):
            A(f"  v_fma_f32 {vr(o+r)}, {vr(ml+2)}, {vr(o+4+r)}, {vr(o+r)}")
        for r in range(4):
            A(f"  v_mov_b32 {vr(t+r)}, {vr(o+r)}")
        A("  s_nop 1")
        for r in range(4):
            A(f"  v_permlane32_swap_b32 {vr(o+r)}, {vr(t+r)}")
        for r in range(4):
            A(f"  v_add_f32 {vr(o+r)}, {vr(o+r)}, {vr(t+r)}")
        for r in range(4):
            A(f"  v_mul_f32 {vr(o+r)}, {vr(a)}, {vr(o+r)}")
        A(f"  v_cvt_pk_bf16_f32 {vr(t)}, {vr(o)}, {vr(o+1)}")
        A(f"  v_cvt_pk_bf16_f32 {vr(t+1)}, {vr(o+2)}, {vr(o+3)}")
        A("  s_mov_b32 exec_hi, 0")
        A(f"  buffer_store_dwordx2 {vr(t,2)}, {vr(b)}, {srd_out}, s54 offen")

    if mode == "atomic":
        A("  s_mov_b32 s36, s26")
        A("  s_mov_b32 s37, s27")
        A(f"  s_mov_b32 s38, {64*8*128*2}")
        A("  s_lshr_b32 s56, s2, 2")
        A(f"  v_mov_b32 {vr(vX)}, {FLAG}")
        A("  s_waitcnt vmcnt(0)")
        A("  s_barrier")
        A(f"  s_cmp_lg_u32 s{sW}, 0")
        A("  s_cbranch_scc1 L_wait")
        A("  s_lshl_b32 s54, s56, 2")
        A(f"  v_mov_b32 {vr(vY)}, s54")
        A(f"  v_mov_b32 {vr(vMn)}, 1")
        A("  s_mov_b64 exec, 1")
        A(f"  global_atomic_add {vr(vMn)}, {vr(vY)}, {vr(vMn)}, s[28:29] sc0 sc1")
        A("  s_waitcnt vmcnt(0)")
        A(f"  ds_write_b32 {vr(vX)}, {vr(vMn)}")
        A("  s_mov_b64 exec, -1")
        A("  s_waitcnt lgkmcnt(0)")
        A("L_wait:")
        A("  s_barrier")
        A(f"  ds_read_b32 {vr(vY)}, {vr(vX)}")
        A("  s_waitcnt lgkmcnt(0)")
        A(f"  v_readfirstlane_b32 s57, {vr(vY)}")
        A("  s_nop 3")
        A("  s_cmp_lg_u32 s57, 3")
        A("  s_cbranch_scc1 L_done")
        combine(56, sW, "s[32:35]", "s[36:39]", 0, K, "sc0 sc1")
        A("L_done:")
    if stamps:
        A("  s_mov_b64 exec, -1")
        A("  s_waitcnt vmcnt(0)")
        A("  s_memrealtime s[64:65]")
        A("  s_waitcnt lgkmcnt(0)")
        A(f"  s_lshl_b32 s54, s2, 3")
        A(f"  s_add_u32 s54, s54, s{sW}")
        A(f"  s_lshl_b32 s54, s54, 4")
        A(f"  s_add_u32 s54, s54, {16<<20}")
        A(f"  s_mov_b32 s34, {32<<20}")
        A(f"  v_mov_b32 {vr(F)}, s60")
        A(f"  v_mov_b32 {vr(F+1)}, s62")
        A(f"  v_mov_b32 {vr(F+2)}, s64")
        A(f"  v_mov_b32 {vr(F+3)}, s57")
        A("  s_mov_b64 exec, 1")
        A(f"  buffer_store_dwordx4 {vr(F,4)}, off, s[32:35], s54")
    A("L_end:")
    A("  s_endpgm")

    def kd(name, nv, ns):
        A(f".amdhsa_kernel {name}")
        A(f"  .amdhsa_next_free_vgpr {nv}")
        A(f"  .amdhsa_next_free_sgpr {ns}")
        A(f"  .amdhsa_accum_offset {(nv+3)//4*4}")
        A("  .amdhsa_group_segment_fixed_size 0")
        A("  .amdhsa_kernarg_size 112")
        A("  .amdhsa_user_sgpr_count 2")
        A("  .amdhsa_user_sgpr_kernarg_segment_ptr 1")
        A("  .amdhsa_system_sgpr_workgroup_id_x 1")
        A("  .amdhsa_float_denorm_mode_32 3")
        A(".end_amdhsa_kernel")

    if mode != "atomic":
        A(".globl combine_kernel")
        A(".p2align 8")
        A(".type combine_kernel,@function")
        A("combine_kernel:")
        A("  s_cmp_ge_u32 s2, 64")
        A("  s_cbranch_scc1 L_cend")
        A("  s_load_dwordx2 s[36:37], s[0:1], 88")
        A("  s_load_dwordx2 s[32:33], s[0:1], 104")
        A("  v_lshrrev_b32 v1, 6, v0")
        A("  v_and_b32 v0, 63, v0")
        A("  v_readfirstlane_b32 s3, v1")
        A(f"  s_mov_b32 s34, {NWG*8*REC}")
        A("  s_mov_b32 s35, 0x20000")
        A(f"  s_mov_b32 s38, {64*8*128*2}")
        A("  s_mov_b32 s39, 0x20000")
        A("  s_waitcnt lgkmcnt(0)")
        combine(2, 3, "s[32:35]", "s[36:39]", 0, 4, "")
        A("L_cend:")
        A("  s_endpgm")
    A('.section .rodata,"a"')
    A(".p2align 6")
    kd(kname, NV, 72)
    if mode != "atomic":
        A(".p2align 6")
        kd("combine_kernel", 32, 72)
    return "\n".join(L) + "\n"

if __name__ == "__main__":
    out = sys.argv[1]
    kw = dict(a.split("=", 1) for a in sys.argv[2:])
    for k in list(kw):
        if kw[k] in ("True", "False"):
            kw[k] = kw[k] == "True"
    open(out, "w").write(gen(**kw))
```

```python
import sys, struct, math

NAME = "standalone__kv_cache_quant_pre_rope_vs_post_rope__sampling"
HEADER = open("cdna_kernels/%s.s.ref" % NAME).read().split("; Override launch")[0]

def f32(x):
    return "0x%08x" % struct.unpack("<I", struct.pack("<f", x))[0]

class Regs:
    def __init__(self, start):
        self.n = start
    def alloc(self, cnt, align=1):
        self.n = (self.n + align - 1) // align * align
        r = self.n
        self.n += cnt
        return r

def vr(a, n=1):
    return f"v{a}" if n == 1 else f"v[{a}:{a+n-1}]"

def gen(mode="atomic", kvpol="nt", vpol=None, cspol="nt", smallpol="", stamps=False, padto=0):
    if vpol is None:
        vpol = kvpol
    NW = 8
    NWG = 256
    NT = 1024 // 16 // NW
    ROW = 272
    WREG = 16 * ROW
    SCB = NW * WREG
    FLAG = SCB + NW * NT * 256
    LDS = FLAG + 256
    OROW = 528
    MLOFF = 8 * OROW
    REC = 640
    kname = NAME + "_kernel"
    L = []
    A = L.append
    A(HEADER.rstrip("\n"))
    if mode == "atomic":
        A(f"; @launch grid=({NWG},1,1) block=({NW*64},1,1) lds={LDS}")
    else:
        A(f"; @launch kernel={kname} grid=({NWG},1,1) block=({NW*64},1,1) lds={LDS}")
        A(f"; @launch kernel=combine_kernel grid=(64,1,1) block=(512,1,1) lds=0")
    A('.amdgcn_target "amdgcn-amd-amdhsa--gfx950"')
    A(".text")
    A(f".globl {kname}")
    A(".p2align 8")
    A(f".type {kname},@function")
    A(f"{kname}:")

    R = Regs(1)
    vC, vG = R.alloc(1), R.alloc(1)
    vKo, vCo, vLw, vLr, vSc = (R.alloc(1) for _ in range(5))
    vM, vL = R.alloc(2, 2), None
    vL = vM + 1
    vAl = R.alloc(2, 2)
    vMn = R.alloc(1)
    vX, vY = R.alloc(1), R.alloc(1)
    K = R.alloc(32, 4)
    CS = R.alloc(32, 4)
    V = R.alloc(32, 4)
    SC = R.alloc(16, 4)
    Q = R.alloc(16, 4)
    O = R.alloc(32, 4)
    F = R.alloc(8, 4)
    T = R.alloc(8, 4)
    W = R.alloc(4, 4)
    G = R.alloc(16, 4)
    VA = R.alloc(16, 4)
    AF = R.alloc(16, 4)
    S = R.alloc(4, 4)
    P = R.alloc(2, 2)
    NV = R.n
    sK, sC, sT, sW = 48, 49, 50, 3
    sSelLo, sSelHi, sScale = 51, 52, 53

    A(f"  s_cmp_ge_u32 s2, {NWG}")
    A("  s_cbranch_scc1 L_end")
    A("  s_load_dwordx16 s[4:19], s[0:1], 0")
    A("  s_load_dwordx8 s[20:27], s[0:1], 64")
    A("  s_load_dwordx4 s[28:31], s[0:1], 96")
    padto = int(padto)
    if stamps or padto:
        A("  s_memrealtime s[60:61]")
    A(f"  v_lshrrev_b32 {vr(vX)}, 6, v0")
    A("  v_and_b32 v0, 63, v0")
    A(f"  v_readfirstlane_b32 s{sW}, {vr(vX)}")
    A(f"  v_and_b32 {vr(vC)}, 15, v0")
    A(f"  v_lshrrev_b32 {vr(vG)}, 4, v0")
    A(f"  v_lshlrev_b32 {vr(vKo)}, 4, {vr(vC)}")
    A(f"  v_lshl_add_u32 {vr(vKo)}, {vr(vG)}, 11, {vr(vKo)}")
    A(f"  v_lshrrev_b32 {vr(vCo)}, 1, {vr(vKo)}")
    A(f"  s_lshl_b32 s{sK}, s2, 19")
    A(f"  s_lshl_b32 s54, s{sW}, 13")
    A(f"  s_add_u32 s{sK}, s{sK}, s54")
    A(f"  s_and_b32 s{sC}, s{sK}, {(1<<21)-1}")
    A(f"  s_lshr_b32 s{sC}, s{sC}, 1")
    A(f"  v_lshrrev_b32 {vr(vX)}, 3, v0")
    A(f"  v_lshlrev_b32 {vr(vX)}, 8, {vr(vX)}")
    A(f"  v_and_b32 {vr(vY)}, 7, v0")
    A(f"  v_lshl_add_u32 {vr(vX)}, {vr(vY)}, 2, {vr(vX)}")
    A(f"  s_lshr_b32 s54, s{sK}, 8")
    A(f"  v_add_u32 {vr(vX)}, s54, {vr(vX)}")
    A(f"  v_lshlrev_b32 {vr(vY)}, 8, {vr(vY)}")
    A(f"  v_lshl_add_u32 {vr(vY)}, {vr(vG)}, 5, {vr(vY)}")
    A(f"  s_lshr_b32 s55, s2, 2")
    A(f"  s_lshl_b32 s55, s55, 11")
    A("  s_mov_b32 s34, 0x8000000")
    A("  s_mov_b32 s35, 0x20000")
    A("  s_mov_b32 s38, 0x8000000")
    A("  s_mov_b32 s39, 0x20000")
    A("  s_mov_b32 s42, 0x100000")
    A("  s_mov_b32 s43, 0x20000")
    A("  s_mov_b32 s46, 0x100000")
    A("  s_mov_b32 s47, 0x20000")
    A("  s_waitcnt lgkmcnt(0)")
    A("  s_add_u32 s4, s4, s55")
    A("  s_addc_u32 s5, s5, 0")
    A("  s_mov_b32 s32, s6")
    A("  s_mov_b32 s33, s7")
    A("  s_mov_b32 s36, s12")
    A("  s_mov_b32 s37, s13")
    A("  s_mov_b32 s40, s22")
    A("  s_mov_b32 s41, s23")
    A("  s_mov_b32 s44, s24")
    A("  s_mov_b32 s45, s25")
    QR, QC, QS = O, O + 16, G
    SR = AF
    for i, p in enumerate((8, 10, 14, 16)):
        A(f"  global_load_dword {vr(SR+i)}, {vr(vX)}, s[{p}:{p+1}] {smallpol}")
    for base, p in ((QR, 4), (QC, 18), (QS, 20)):
        for h in range(2):
            for u in range(2):
                A(f"  global_load_dwordx4 {vr(base+8*h+4*u,4)}, {vr(vY)}, s[{p}:{p+1}] offset:{128*h+16*u} {smallpol}")

    def load_k(j):
        for h in range(2):
            A(f"  buffer_load_dwordx4 {vr(K+8*j+4*h,4)}, {vr(vKo)}, s[32:35], s{sK} offen offset:{512*j+256*h} {kvpol}")
        for h in range(2):
            A(f"  buffer_load_dwordx2 {vr(CS+8*j+2*h,2)}, {vr(vCo)}, s[40:43], s{sC} offen offset:{256*j+128*h} {cspol}")
        for h in range(2):
            A(f"  buffer_load_dwordx2 {vr(CS+8*j+4+2*h,2)}, {vr(vCo)}, s[44:47], s{sC} offen offset:{256*j+128*h} {cspol}")
    def load_v(jp):
        for j in (2*jp, 2*jp+1):
            for h in range(2):
                A(f"  buffer_load_dwordx4 {vr(V+8*j+4*h,4)}, {vr(vKo)}, s[36:39], s{sK} offen offset:{512*j+256*h} {vpol}")
    for j in range(4):
        load_k(j)
    load_v(0); load_v(1)
    A(f"  s_add_u32 s{sK}, s{sK}, {8192*NW}")
    A(f"  s_add_u32 s{sC}, s{sC}, {4096*NW}")

    A(f"  s_mov_b32 s{sSelLo}, 0x05040100")
    A(f"  s_mov_b32 s{sSelHi}, 0x07060302")
    A(f"  s_mov_b32 s{sScale}, {f32(math.log2(math.e) / math.sqrt(128.0))}")
    A(f"  s_mul_i32 s54, s{sW}, {WREG}")
    A(f"  v_mul_u32_u24 {vr(vLw)}, {4*ROW}, {vr(vG)}")
    A(f"  v_lshl_add_u32 {vr(vLw)}, {vr(vC)}, 4, {vr(vLw)}")
    A(f"  v_add_u32 {vr(vLw)}, s54, {vr(vLw)}")
    A(f"  v_mul_u32_u24 {vr(vLr)}, {ROW}, {vr(vC)}")
    A(f"  v_lshl_add_u32 {vr(vLr)}, {vr(vG)}, 6, {vr(vLr)}")
    A(f"  v_add_u32 {vr(vLr)}, s54, {vr(vLr)}")
    A(f"  s_mul_i32 s54, s{sW}, {NT*256}")
    A(f"  s_add_u32 s54, s54, {SCB}")
    A(f"  v_lshlrev_b32 {vr(vSc)}, 6, {vr(vG)}")
    A(f"  v_add_u32 {vr(vSc)}, s54, {vr(vSc)}")
    A(f"  v_lshlrev_b32 {vr(vX)}, 5, v0")
    A(f"  v_add_u32 {vr(vX)}, s54, {vr(vX)}")
    A("  s_waitcnt vmcnt(44)")
    for e in range(2):
        for i in range(4):
            if e == 0:
                A(f"  v_lshlrev_b32 {vr(F+i)}, 16, {vr(SR+i)}")
            else:
                A(f"  v_and_b32 {vr(F+4+i)}, 0xffff0000, {vr(SR+i)}")
    for e in range(2):
        A(f"  v_mul_f32 {vr(F+4*e+1)}, {vr(F+4*e)}, {vr(F+4*e+1)}")
        A(f"  v_mul_f32 {vr(F+4*e+3)}, {vr(F+4*e+2)}, {vr(F+4*e+3)}")
        A(f"  v_xor_b32 {vr(F+4*e+1)}, 0x80000000, {vr(F+4*e+1)}")
        A(f"  v_xor_b32 {vr(F+4*e+3)}, 0x80000000, {vr(F+4*e+3)}")
    A(f"  ds_write_b128 {vr(vX)}, {vr(F,4)}")
    A(f"  ds_write_b128 {vr(vX)}, {vr(F+4,4)} offset:16")
    A("  s_waitcnt lgkmcnt(0)")
    def read_sc():
        for j in range(4):
            A(f"  ds_read_b128 {vr(SC+4*j,4)}, {vr(vSc)} offset:{16*j}")
        A(f"  v_add_u32 {vr(vSc)}, 256, {vr(vSc)}")
    read_sc()
    A("  s_waitcnt vmcnt(32)")
    for i in range(4):
        for u in range(2):
            p = 2*i + u
            for e, sel in enumerate((sSelLo, sSelHi)):
                r = 2*u + e
                A(f"  v_perm_b32 {vr(F+r)}, {vr(QR+8+p)}, {vr(QR+p)}, s{sel}")
                A(f"  v_perm_b32 {vr(T+r)}, {vr(QS+p)}, {vr(QC+p)}, s{sel}")
                A(f"  v_perm_b32 {vr(T+4+r)}, {vr(QC+8+p)}, {vr(QS+8+p)}, s{sel}")
        for r in range(4):
            A(f"  v_dot2_f32_bf16 {vr(T+r)}, {vr(F+r)}, {vr(T+r)}, 0 neg_hi:[0,1,0]")
        for r in range(4):
            A(f"  v_dot2_f32_bf16 {vr(T+4+r)}, {vr(F+r)}, {vr(T+4+r)}, 0")
        A(f"  v_cvt_pk_bf16_f32 {vr(Q+4*i)}, {vr(T)}, {vr(T+1)}")
        A(f"  v_cvt_pk_bf16_f32 {vr(Q+4*i+1)}, {vr(T+2)}, {vr(T+3)}")
        A("  s_nop 0")
        A(f"  v_cvt_pk_bf16_f32 {vr(Q+4*i+2)}, {vr(T+4)}, {vr(T+5)}")
        A(f"  v_cvt_pk_bf16_f32 {vr(Q+4*i+3)}, {vr(T+6)}, {vr(T+7)}")
    for i in range(32):
        A(f"  v_mov_b32 {vr(O+i)}, 0")
    A(f"  v_mov_b32 {vr(vM)}, {f32(-3.0e38)}")
    A(f"  v_mov_b32 {vr(vL)}, 0")
    A(f"  s_mov_b32 s{sT}, {NT}")

    A("L_loop:")
    A(f"  s_cmp_eq_u32 s{sT}, 1")
    A("  s_cselect_b32 s34, 0, s34")
    A("  s_cselect_b32 s38, 0, s38")
    A("  s_cselect_b32 s42, 0, s42")
    A("  s_cselect_b32 s46, 0, s46")
    for j in range(4):
        kj, cj = K + 8*j, CS + 8*j
        A("  s_waitcnt vmcnt(26)" + (" lgkmcnt(0)" if j == 0 else ""))
        for i in range(8):
            A(f"  v_cvt_f32_i32 {vr(F+i)}, {vr(kj+i)}")
        for r in range(4):
            sel = sSelLo if r % 2 == 0 else sSelHi
            A(f"  v_perm_b32 {vr(T+r)}, {vr(cj+4+r//2)}, {vr(cj+r//2)}, s{sel}")
        for r in range(4):
            sel = sSelLo if r % 2 == 0 else sSelHi
            A(f"  v_perm_b32 {vr(T+4+r)}, {vr(cj+2+r//2)}, {vr(cj+6+r//2)}, s{sel}")
        load_k(j)
        for i in range(4):
            A(f"  v_pk_fma_f32 {vr(F+2*i,2)}, {vr(F+2*i,2)}, {vr(SC+4*j,2)}, {vr(SC+4*j,2)} op_sel:[0,0,1] op_sel_hi:[1,0,1]")
        for r in range(4):
            A(f"  v_cvt_pk_bf16_f32 {vr(F+r)}, {vr(F+r)}, {vr(F+4+r)}")
        for r in range(4):
            A(f"  v_dot2_f32_bf16 {vr(T+r)}, {vr(F+r)}, {vr(T+r)}, 0 neg_hi:[0,1,0]")
        for r in range(4):
            A(f"  v_dot2_f32_bf16 {vr(T+4+r)}, {vr(F+r)}, {vr(T+4+r)}, 0")
        A(f"  v_cvt_pk_bf16_f32 {vr(W)}, {vr(T)}, {vr(T+1)}")
        A(f"  v_cvt_pk_bf16_f32 {vr(W+1)}, {vr(T+2)}, {vr(T+3)}")
        A("  s_nop 0")
        A(f"  v_cvt_pk_bf16_f32 {vr(W+2)}, {vr(T+4)}, {vr(T+5)}")
        A(f"  v_cvt_pk_bf16_f32 {vr(W+3)}, {vr(T+6)}, {vr(T+7)}")
        A(f"  ds_write_b128 {vr(vLw)}, {vr(W,4)} offset:{ROW*j}")
    for i in range(4):
        A(f"  ds_read_b128 {vr(AF+4*i,4)}, {vr(vLr)} offset:{16*i}")
    def v_half(jp):
        A("  s_waitcnt vmcnt(28)")
        for i in range(16):
            A(f"  v_cvt_f32_i32 {vr(G+i)}, {vr(V+16*jp+i)}")
        load_v(jp)
        for e in range(2):
            j = 2*jp + e
            for i in range(4):
                A(f"  v_pk_fma_f32 {vr(G+8*e+2*i,2)}, {vr(G+8*e+2*i,2)}, {vr(SC+4*j+2,2)}, {vr(SC+4*j+2,2)} op_sel:[0,0,1] op_sel_hi:[1,0,1]")
        for i in range(8):
            A(f"  v_cvt_pk_bf16_f32 {vr(VA+2*i+jp)}, {vr(G+i)}, {vr(G+8+i)}")
    A("  s_waitcnt lgkmcnt(0)")
    for i in range(4):
        c = "0" if i == 0 else vr(S, 4)
        A(f"  v_mfma_f32_16x16x32_bf16 {vr(S,4)}, {vr(AF+4*i,4)}, {vr(Q+4*i,4)}, {c}")
    v_half(0)
    A(f"  v_max3_f32 {vr(vX)}, {vr(S)}, {vr(S+1)}, {vr(S+2)}")
    A(f"  v_max_f32 {vr(vX)}, {vr(vX)}, {vr(S+3)}")
    A(f"  v_mov_b32 {vr(vY)}, {vr(vX)}")
    A("  s_nop 1")
    A(f"  v_permlane32_swap_b32 {vr(vX)}, {vr(vY)}")
    A(f"  v_max_f32 {vr(vX)}, {vr(vX)}, {vr(vY)}")
    A(f"  v_mov_b32 {vr(vY)}, {vr(vX)}")
    A("  s_nop 1")
    A(f"  v_permlane16_swap_b32 {vr(vX)}, {vr(vY)}")
    A(f"  v_max_f32 {vr(vX)}, {vr(vX)}, {vr(vY)}")
    A(f"  v_mul_f32 {vr(vX)}, s{sScale}, {vr(vX)}")
    A(f"  v_max_f32 {vr(vMn)}, {vr(vM)}, {vr(vX)}")
    A(f"  v_sub_f32 {vr(vAl)}, {vr(vM)}, {vr(vMn)}")
    for r in range(4):
        A(f"  v_fma_f32 {vr(S+r)}, {vr(S+r)}, s{sScale}, -{vr(vMn)}")
    A(f"  v_exp_f32 {vr(vAl)}, {vr(vAl)}")
    for r in range(4):
        A(f"  v_exp_f32 {vr(S+r)}, {vr(S+r)}")
    A(f"  v_mov_b32 {vr(vM)}, {vr(vMn)}")
    A(f"  v_fma_f32 {vr(vL)}, {vr(vL)}, {vr(vAl)}, {vr(S)}")
    A(f"  v_add_f32 {vr(vX)}, {vr(S+1)}, {vr(S+2)}")
    A(f"  v_add_f32 {vr(vL)}, {vr(vL)}, {vr(S+3)}")
    A(f"  v_cvt_pk_bf16_f32 {vr(P)}, {vr(S)}, {vr(S+1)}")
    A(f"  v_cvt_pk_bf16_f32 {vr(P+1)}, {vr(S+2)}, {vr(S+3)}")
    A(f"  v_add_f32 {vr(vL)}, {vr(vL)}, {vr(vX)}")
    for i in range(16):
        A(f"  v_pk_mul_f32 {vr(O+2*i,2)}, {vr(O+2*i,2)}, {vr(vAl,2)} op_sel_hi:[1,0]")
    v_half(1)
    read_sc()
    A(f"  s_add_u32 s{sK}, s{sK}, {8192*NW}")
    A(f"  s_add_u32 s{sC}, s{sC}, {4096*NW}")
    for i in range(8):
        A(f"  v_mfma_f32_16x16x16_bf16 {vr(O+4*i,4)}, {vr(VA+2*i,2)}, {vr(P,2)}, {vr(O+4*i,4)}")
    A(f"  s_sub_u32 s{sT}, s{sT}, 1")
    A(f"  s_cmp_lg_u32 s{sT}, 0")
    A("  s_cbranch_scc1 L_loop")

    if stamps:
        A("  s_memrealtime s[62:63]")
    A(f"  v_mov_b32 {vr(vY)}, {vr(vL)}")
    A(f"  v_cmp_lt_u32 vcc, 7, {vr(vC)}")
    A(f"  v_and_b32 {vr(vX)}, 7, {vr(vC)}")
    A(f"  v_permlane32_swap_b32 {vr(vL)}, {vr(vY)}")
    A(f"  v_add_f32 {vr(vL)}, {vr(vL)}, {vr(vY)}")
    A(f"  v_mov_b32 {vr(vY)}, {vr(vL)}")
    A(f"  s_mul_i32 s54, s{sW}, {WREG}")
    A(f"  v_mul_u32_u24 {vr(vLw)}, {OROW}, {vr(vX)}")
    A(f"  v_permlane16_swap_b32 {vr(vL)}, {vr(vY)}")
    A(f"  v_add_f32 {vr(vL)}, {vr(vL)}, {vr(vY)}")
    A(f"  v_lshl_add_u32 {vr(vLr)}, {vr(vX)}, 3, s54")
    A(f"  v_lshl_add_u32 {vr(vLw)}, {vr(vG)}, 6, {vr(vLw)}")
    A(f"  v_lshrrev_b32 {vr(vX)}, 3, {vr(vC)}")
    A(f"  v_lshl_add_u32 {vr(vLw)}, {vr(vX)}, 8, {vr(vLw)}")
    A(f"  v_add_u32 {vr(vLw)}, s54, {vr(vLw)}")
    A("  s_waitcnt lgkmcnt(0)")
    A(f"  ds_write_b64 {vr(vLr)}, {vr(vM,2)} offset:{MLOFF}")
    for rho in range(4):
        for r in range(4):
            A(f"  v_cndmask_b32 {vr(G+4*rho+r)}, {vr(O+4*r+rho)}, {vr(O+16+4*r+rho)}, vcc")
        A(f"  ds_write_b128 {vr(vLw)}, {vr(G+4*rho,4)} offset:{16*rho}")
    A(f"  v_lshrrev_b32 {vr(vX)}, 5, v0")
    A(f"  v_and_b32 {vr(vY)}, 31, v0")
    A(f"  v_mul_u32_u24 {vr(vLw)}, {4*WREG}, {vr(vX)}")
    A(f"  s_mul_i32 s54, s{sW}, {OROW}")
    A(f"  v_lshl_add_u32 {vr(vLr)}, {vr(vY)}, 4, s54")
    A(f"  v_add_u32 {vr(vLr)}, {vr(vLr)}, {vr(vLw)}")
    A(f"  s_lshl_b32 s54, s{sW}, 3")
    A(f"  v_mov_b32 {vr(vSc)}, s54")
    A(f"  v_cmp_lt_u32 vcc, 31, v0")
    A("  s_waitcnt vmcnt(0) lgkmcnt(0)")
    A("  s_barrier")
    ML, MH, OP = K, K + 16, V
    for w in range(8):
        A(f"  ds_read_b64 {vr(ML+2*w,2)}, {vr(vSc)} offset:{MLOFF + w*WREG}")
    for w in range(4):
        A(f"  ds_read_b128 {vr(OP+4*w,4)}, {vr(vLr)} offset:{w*WREG}")
    A(f"  s_lshl_b32 s54, s2, 3")
    A(f"  s_add_u32 s54, s54, s{sW}")
    A(f"  s_mul_i32 s54, s54, {REC}")
    A(f"  v_lshlrev_b32 {vr(vKo)}, 4, v0")
    A("  s_mov_b32 s32, s30")
    A("  s_mov_b32 s33, s31")
    A(f"  s_mov_b32 s34, {NWG*8*REC}")
    A("  s_waitcnt lgkmcnt(4)")
    A(f"  v_max3_f32 {vr(vMn)}, {vr(ML)}, {vr(ML+2)}, {vr(ML+4)}")
    A(f"  v_max3_f32 {vr(vMn)}, {vr(vMn)}, {vr(ML+6)}, {vr(ML+8)}")
    A(f"  v_max3_f32 {vr(vMn)}, {vr(vMn)}, {vr(ML+10)}, {vr(ML+12)}")
    A(f"  v_max_f32 {vr(vMn)}, {vr(vMn)}, {vr(ML+14)}")
    for w in range(8):
        A(f"  v_sub_f32 {vr(ML+2*w)}, {vr(ML+2*w)}, {vr(vMn)}")
    for w in range(8):
        A(f"  v_exp_f32 {vr(ML+2*w)}, {vr(ML+2*w)}")
    A(f"  v_mul_f32 {vr(vL)}, {vr(ML)}, {vr(ML+1)}")
    for w in range(4):
        A(f"  v_cndmask_b32 {vr(MH+w)}, {vr(ML+2*w)}, {vr(ML+8+2*w)}, vcc")
    for w in range(1, 8):
        A(f"  v_fma_f32 {vr(vL)}, {vr(ML+2*w)}, {vr(ML+2*w+1)}, {vr(vL)}")
    A("  s_waitcnt lgkmcnt(0)")
    for r in range(4):
        A(f"  v_mul_f32 {vr(F+r)}, {vr(MH)}, {vr(OP+r)}")
    for w in range(1, 4):
        for r in range(4):
            A(f"  v_fma_f32 {vr(F+r)}, {vr(MH+w)}, {vr(OP+4*w+r)}, {vr(F+r)}")
    for r in range(4):
        A(f"  v_mov_b32 {vr(T+r)}, {vr(F+r)}")
    A(f"  v_cmp_eq_u32 vcc, 32, v0")
    A("  s_nop 0")
    for r in range(4):
        A(f"  v_permlane32_swap_b32 {vr(F+r)}, {vr(T+r)}")
    for r in range(4):
        A(f"  v_add_f32 {vr(F+r)}, {vr(F+r)}, {vr(T+r)}")
    A(f"  v_cndmask_b32 {vr(F)}, {vr(F)}, {vr(vMn)}, vcc")
    A(f"  v_cndmask_b32 {vr(F+1)}, {vr(F+1)}, {vr(vL)}, vcc")
    A("  s_mov_b32 exec_lo, -1")
    A("  s_mov_b32 exec_hi, 1")
    stpol = "sc0 sc1" if mode == "atomic" else ""
    A(f"  buffer_store_dwordx4 {vr(F,4)}, {vr(vKo)}, s[32:35], s54 offen {stpol}")
    A("  s_mov_b64 exec, -1")

    def combine(sHead, sWv, srd_ws, srd_out, vLane, base, ldpol):
        a, b, o, ml, t = base, base + 1, base + 4, base + 12, base + 20
        A(f"  s_lshl_b32 s54, s{sHead}, 5")
        A(f"  s_add_u32 s54, s54, s{sWv}")
        A(f"  s_mul_i32 s54, s54, {REC}")
        A(f"  v_lshrrev_b32 {vr(a)}, 5, {vr(vLane)}")
        A(f"  v_mul_u32_u24 {vr(a)}, {16*REC}, {vr(a)}")
        A(f"  v_and_b32 {vr(b)}, 31, {vr(vLane)}")
        A(f"  v_lshl_add_u32 {vr(a)}, {vr(b)}, 4, {vr(a)}")
        A(f"  s_add_u32 s55, s54, {8*REC}")
        A(f"  buffer_load_dwordx4 {vr(o,4)}, {vr(a)}, {srd_ws}, s54 offen {ldpol}")
        A(f"  buffer_load_dwordx4 {vr(o+4,4)}, {vr(a)}, {srd_ws}, s55 offen {ldpol}")
        for s in range(4):
            A(f"  buffer_load_dwordx2 {vr(ml+2*s,2)}, off, {srd_ws}, s54 offset:512 {ldpol}")
            if s < 3:
                A(f"  s_add_u32 s54, s54, {8*REC}")
        A(f"  s_lshl_b32 s54, s{sHead}, 3")
        A(f"  s_add_u32 s54, s54, s{sWv}")
        A(f"  s_lshl_b32 s54, s54, 8")
        A(f"  v_lshlrev_b32 {vr(b)}, 3, {vr(b)}")
        A(f"  v_cmp_lt_u32 vcc, 31, {vr(vLane)}")
        A("  s_waitcnt vmcnt(0)")
        A(f"  v_max3_f32 {vr(a)}, {vr(ml)}, {vr(ml+2)}, {vr(ml+4)}")
        A(f"  v_max_f32 {vr(a)}, {vr(a)}, {vr(ml+6)}")
        for s in range(4):
            A(f"  v_sub_f32 {vr(ml+2*s)}, {vr(ml+2*s)}, {vr(a)}")
        for s in range(4):
            A(f"  v_exp_f32 {vr(ml+2*s)}, {vr(ml+2*s)}")
        A("  s_nop 0")
        A(f"  v_mul_f32 {vr(a)}, {vr(ml)}, {vr(ml+1)}")
        for s in range(1, 4):
            A(f"  v_fma_f32 {vr(a)}, {vr(ml+2*s)}, {vr(ml+2*s+1)}, {vr(a)}")
        A(f"  v_cndmask_b32 {vr(ml)}, {vr(ml)}, {vr(ml+4)}, vcc")
        A(f"  v_cndmask_b32 {vr(ml+2)}, {vr(ml+2)}, {vr(ml+6)}, vcc")
        A(f"  v_rcp_f32 {vr(a)}, {vr(a)}")
        for r in range(4):
            A(f"  v_mul_f32 {vr(o+r)}, {vr(ml)}, {vr(o+r)}")
        for r in range(4):
            A(f"  v_fma_f32 {vr(o+r)}, {vr(ml+2)}, {vr(o+4+r)}, {vr(o+r)}")
        for r in range(4):
            A(f"  v_mov_b32 {vr(t+r)}, {vr(o+r)}")
        A("  s_nop 1")
        for r in range(4):
            A(f"  v_permlane32_swap_b32 {vr(o+r)}, {vr(t+r)}")
        for r in range(4):
            A(f"  v_add_f32 {vr(o+r)}, {vr(o+r)}, {vr(t+r)}")
        for r in range(4):
            A(f"  v_mul_f32 {vr(o+r)}, {vr(a)}, {vr(o+r)}")
        A(f"  v_cvt_pk_bf16_f32 {vr(t)}, {vr(o)}, {vr(o+1)}")
        A(f"  v_cvt_pk_bf16_f32 {vr(t+1)}, {vr(o+2)}, {vr(o+3)}")
        A("  s_mov_b32 exec_hi, 0")
        A(f"  buffer_store_dwordx2 {vr(t,2)}, {vr(b)}, {srd_out}, s54 offen")

    if mode == "atomic":
        A("  s_mov_b32 s36, s26")
        A("  s_mov_b32 s37, s27")
        A(f"  s_mov_b32 s38, {64*8*128*2}")
        A("  s_lshr_b32 s56, s2, 2")
        A(f"  v_mov_b32 {vr(vX)}, {FLAG}")
        A("  s_waitcnt vmcnt(0)")
        A("  s_barrier")
        A(f"  s_cmp_lg_u32 s{sW}, 0")
        A("  s_cbranch_scc1 L_wait")
        A("  s_lshl_b32 s54, s56, 2")
        A(f"  v_mov_b32 {vr(vY)}, s54")
        A(f"  v_mov_b32 {vr(vMn)}, 1")
        A("  s_mov_b64 exec, 1")
        A(f"  global_atomic_add {vr(vMn)}, {vr(vY)}, {vr(vMn)}, s[28:29] sc0 sc1")
        A("  s_waitcnt vmcnt(0)")
        A(f"  ds_write_b32 {vr(vX)}, {vr(vMn)}")
        A("  s_mov_b64 exec, -1")
        A("  s_waitcnt lgkmcnt(0)")
        A("L_wait:")
        A("  s_barrier")
        A(f"  ds_read_b32 {vr(vY)}, {vr(vX)}")
        A("  s_waitcnt lgkmcnt(0)")
        A(f"  v_readfirstlane_b32 s57, {vr(vY)}")
        A("  s_nop 3")
        A("  s_cmp_lg_u32 s57, 3")
        A("  s_cbranch_scc1 L_done")
        combine(56, sW, "s[32:35]", "s[36:39]", 0, K, "sc0 sc1")
        A("L_done:")
    if stamps:
        A("  s_mov_b64 exec, -1")
        A("  s_waitcnt vmcnt(0)")
        A("  s_memrealtime s[64:65]")
        A("  s_waitcnt lgkmcnt(0)")
        A(f"  s_lshl_b32 s54, s2, 3")
        A(f"  s_add_u32 s54, s54, s{sW}")
        A(f"  s_lshl_b32 s54, s54, 4")
        A(f"  s_add_u32 s54, s54, {16<<20}")
        A(f"  s_mov_b32 s34, {32<<20}")
        A(f"  v_mov_b32 {vr(F)}, s60")
        A(f"  v_mov_b32 {vr(F+1)}, s62")
        A(f"  v_mov_b32 {vr(F+2)}, s64")
        A(f"  v_mov_b32 {vr(F+3)}, s57")
        A("  s_mov_b64 exec, 1")
        A(f"  buffer_store_dwordx4 {vr(F,4)}, off, s[32:35], s54")
    if padto:
        A("L_pad:")
        A("  s_memrealtime s[64:65]")
        A("  s_waitcnt lgkmcnt(0)")
        A("  s_sub_u32 s64, s64, s60")
        A(f"  s_cmp_lt_u32 s64, {padto*100}")
        A("  s_cbranch_scc1 L_pad")
    A("L_end:")
    A("  s_endpgm")

    def kd(name, nv, ns):
        A(f".amdhsa_kernel {name}")
        A(f"  .amdhsa_next_free_vgpr {nv}")
        A(f"  .amdhsa_next_free_sgpr {ns}")
        A(f"  .amdhsa_accum_offset {(nv+3)//4*4}")
        A("  .amdhsa_group_segment_fixed_size 0")
        A("  .amdhsa_kernarg_size 112")
        A("  .amdhsa_user_sgpr_count 2")
        A("  .amdhsa_user_sgpr_kernarg_segment_ptr 1")
        A("  .amdhsa_system_sgpr_workgroup_id_x 1")
        A("  .amdhsa_float_denorm_mode_32 3")
        A(".end_amdhsa_kernel")

    if mode != "atomic":
        A(".globl combine_kernel")
        A(".p2align 8")
        A(".type combine_kernel,@function")
        A("combine_kernel:")
        A("  s_cmp_ge_u32 s2, 64")
        A("  s_cbranch_scc1 L_cend")
        A("  s_load_dwordx2 s[36:37], s[0:1], 88")
        A("  s_load_dwordx2 s[32:33], s[0:1], 104")
        A("  v_lshrrev_b32 v1, 6, v0")
        A("  v_and_b32 v0, 63, v0")
        A("  v_readfirstlane_b32 s3, v1")
        A(f"  s_mov_b32 s34, {NWG*8*REC}")
        A("  s_mov_b32 s35, 0x20000")
        A(f"  s_mov_b32 s38, {64*8*128*2}")
        A("  s_mov_b32 s39, 0x20000")
        A("  s_waitcnt lgkmcnt(0)")
        combine(2, 3, "s[32:35]", "s[36:39]", 0, 4, "")
        A("L_cend:")
        A("  s_endpgm")
    A('.section .rodata,"a"')
    A(".p2align 6")
    kd(kname, NV, 72)
    if mode != "atomic":
        A(".p2align 6")
        kd("combine_kernel", 32, 72)
    return "\n".join(L) + "\n"

if __name__ == "__main__":
    out = sys.argv[1]
    kw = dict(a.split("=", 1) for a in sys.argv[2:])
    for k in list(kw):
        if kw[k] in ("True", "False"):
            kw[k] = kw[k] == "True"
    open(out, "w").write(gen(**kw))
```

```python
import sys, struct, math

NAME = "standalone__kv_cache_quant_pre_rope_vs_post_rope__sampling"
HEADER = open("cdna_kernels/%s.s.ref" % NAME).read().split("; Override launch")[0]

def f32(x):
    return "0x%08x" % struct.unpack("<I", struct.pack("<f", x))[0]

class Regs:
    def __init__(self, start):
        self.n = start
    def alloc(self, cnt, align=1):
        self.n = (self.n + align - 1) // align * align
        r = self.n
        self.n += cnt
        return r

def vr(a, n=1):
    return f"v{a}" if n == 1 else f"v[{a}:{a+n-1}]"

def gen(kvpol="nt", cspol="nt", smallpol="", stamps=False, padto=0, codepf=0, smallfirst=True, xpol="sc0 sc1"):
    padto, codepf = int(padto), int(codepf)
    NW = 4
    NWG = 256
    NT = 1024 // 16 // NW
    ROW = 272
    WREG = 16 * ROW
    SCB = NW * WREG
    QB = SCB + 1024 * 16 + 1024
    FLAG = QB + 8 * ROW
    LDS = FLAG + 16
    OROW = 528
    MLOFF = 8 * OROW
    REC = 640
    kname = NAME + "_kernel"
    L = []
    A = L.append
    A(HEADER.rstrip("\n"))
    A(f"; @launch grid=({NWG},1,1) block=({NW*64},1,1) lds={LDS}")
    A('.amdgcn_target "amdgcn-amd-amdhsa--gfx950"')
    A(".text")
    A(f".globl {kname}")
    A(".p2align 8")
    A(f".type {kname},@function")
    A(f"{kname}:")

    R = Regs(1)
    vC, vG = R.alloc(1), R.alloc(1)
    vKo, vCo, vLw, vLr, vSc = (R.alloc(1) for _ in range(5))
    vM = R.alloc(2, 2)
    vL = vM + 1
    vAl = R.alloc(2, 2)
    vMn = R.alloc(1)
    vX, vY, vT = R.alloc(1), R.alloc(1), R.alloc(1)
    K = R.alloc(32, 4)
    CS = R.alloc(32, 4)
    V = R.alloc(32, 4)
    SC = R.alloc(16, 4)
    Q = R.alloc(16, 4)
    O = R.alloc(32, 4)
    F = R.alloc(8, 4)
    T = R.alloc(8, 4)
    W = R.alloc(4, 4)
    G = R.alloc(16, 4)
    VA = R.alloc(16, 4)
    AF = R.alloc(16, 4)
    S = R.alloc(4, 4)
    P = R.alloc(2, 2)
    NV = R.n
    sK, sC, sT, sW = 48, 49, 50, 3
    sSelLo, sSelHi, sScale = 51, 52, 53
    nstamp = [0]
    def stamp():
        if stamps:
            A(f"  s_memrealtime s[{64+2*nstamp[0]}:{65+2*nstamp[0]}]")
            nstamp[0] += 1

    A(f"  s_cmp_ge_u32 s2, {NWG}")
    A("  s_cbranch_scc1 L_end")
    A("  s_load_dwordx16 s[4:19], s[0:1], 0")
    A("  s_load_dwordx8 s[20:27], s[0:1], 64")
    A("  s_load_dwordx4 s[28:31], s[0:1], 96")
    if padto:
        A("  s_memrealtime s[60:61]")
    stamp()
    A(f"  v_lshrrev_b32 {vr(vX)}, 6, v0")
    A(f"  v_mov_b32 {vr(vT)}, v0")
    A(f"  v_readfirstlane_b32 s{sW}, {vr(vX)}")
    A("  v_and_b32 v0, 63, v0")
    A(f"  v_and_b32 {vr(vC)}, 15, v0")
    A(f"  v_lshrrev_b32 {vr(vG)}, 4, v0")
    A(f"  v_lshlrev_b32 {vr(vKo)}, 4, {vr(vC)}")
    A(f"  v_lshl_add_u32 {vr(vKo)}, {vr(vG)}, 11, {vr(vKo)}")
    A(f"  v_lshrrev_b32 {vr(vCo)}, 1, {vr(vKo)}")
    A(f"  s_lshl_b32 s{sK}, s2, 19")
    A(f"  s_lshl_b32 s54, s{sW}, 13")
    A(f"  s_add_u32 s{sK}, s{sK}, s54")
    A(f"  s_and_b32 s{sC}, s{sK}, {(1<<21)-1}")
    A(f"  s_lshr_b32 s{sC}, s{sC}, 1")
    A(f"  s_lshl_b32 s54, s2, 11")
    A(f"  v_lshl_add_u32 {vr(vX)}, {vr(vT)}, 3, s54")
    A(f"  v_lshrrev_b32 {vr(vY)}, 5, {vr(vT)}")
    A(f"  v_lshlrev_b32 {vr(vY)}, 8, {vr(vY)}")
    A(f"  v_and_b32 {vr(vMn)}, 31, {vr(vT)}")
    A(f"  v_lshl_add_u32 {vr(vY)}, {vr(vMn)}, 2, {vr(vY)}")
    A(f"  s_lshr_b32 s55, s2, 2")
    A(f"  s_lshl_b32 s55, s55, 11")
    A("  s_mov_b32 s34, 0x8000000")
    A("  s_mov_b32 s35, 0x20000")
    A("  s_mov_b32 s38, 0x8000000")
    A("  s_mov_b32 s39, 0x20000")
    A("  s_mov_b32 s42, 0x100000")
    A("  s_mov_b32 s43, 0x20000")
    A("  s_mov_b32 s46, 0x100000")
    A("  s_mov_b32 s47, 0x20000")
    A("  s_waitcnt lgkmcnt(0)")
    stamp()
    A("  s_add_u32 s4, s4, s55")
    A("  s_addc_u32 s5, s5, 0")
    A("  s_mov_b32 s32, s6")
    A("  s_mov_b32 s33, s7")
    A("  s_mov_b32 s36, s12")
    A("  s_mov_b32 s37, s13")
    A("  s_mov_b32 s40, s22")
    A("  s_mov_b32 s41, s23")
    A("  s_mov_b32 s44, s24")
    A("  s_mov_b32 s45, s25")
    SR, QR = AF, AF + 8
    def small_loads():
        for i, p in enumerate((8, 10, 14, 16)):
            A(f"  global_load_dwordx2 {vr(SR+2*i,2)}, {vr(vX)}, s[{p}:{p+1}] {smallpol}")
        for i, p in enumerate((4, 18, 20)):
            for h in range(2):
                A(f"  global_load_dword {vr(QR+2*i+h)}, {vr(vY)}, s[{p}:{p+1}] offset:{128*h} {smallpol}")
    def load_k(j):
        for h in range(2):
            A(f"  buffer_load_dwordx4 {vr(K+8*j+4*h,4)}, {vr(vKo)}, s[32:35], s{sK} offen offset:{512*j+256*h} {kvpol}")
        for h in range(2):
            A(f"  buffer_load_dwordx2 {vr(CS+8*j+2*h,2)}, {vr(vCo)}, s[40:43], s{sC} offen offset:{256*j+128*h} {cspol}")
        for h in range(2):
            A(f"  buffer_load_dwordx2 {vr(CS+8*j+4+2*h,2)}, {vr(vCo)}, s[44:47], s{sC} offen offset:{256*j+128*h} {cspol}")
    def load_v(jp):
        for j in (2*jp, 2*jp+1):
            for h in range(2):
                A(f"  buffer_load_dwordx4 {vr(V+8*j+4*h,4)}, {vr(vKo)}, s[36:39], s{sK} offen offset:{512*j+256*h} {kvpol}")
    def code_prefetch():
        A("  s_getpc_b64 s[56:57]")
        A(f"  s_mul_i32 s54, s{sW}, {128*codepf}")
        A("  s_add_u32 s56, s56, s54")
        A("  s_addc_u32 s57, s57, 0")
        for i in range(codepf):
            A(f"  s_load_dword s58, s[56:57], {128*i}")
    if codepf:
        code_prefetch()
    if smallfirst:
        small_loads()
        for j in range(4):
            load_k(j)
        load_v(0); load_v(1)
        w_sc, w_q = 32 + 6, 32
    else:
        load_k(0)
        small_loads()
        for j in range(1, 4):
            load_k(j)
        load_v(0); load_v(1)
        w_sc, w_q = 26 + 6, 26
    stamp()
    A(f"  s_add_u32 s{sK}, s{sK}, {8192*NW}")
    A(f"  s_add_u32 s{sC}, s{sC}, {4096*NW}")
    A(f"  s_mov_b32 s{sSelLo}, 0x05040100")
    A(f"  s_mov_b32 s{sSelHi}, 0x07060302")
    A(f"  s_mov_b32 s{sScale}, {f32(math.log2(math.e) / math.sqrt(128.0))}")
    A(f"  s_mul_i32 s54, s{sW}, {WREG}")
    A(f"  v_mul_u32_u24 {vr(vLw)}, {4*ROW}, {vr(vG)}")
    A(f"  v_lshl_add_u32 {vr(vLw)}, {vr(vC)}, 4, {vr(vLw)}")
    A(f"  v_add_u32 {vr(vLw)}, s54, {vr(vLw)}")
    A(f"  v_mul_u32_u24 {vr(vLr)}, {ROW}, {vr(vC)}")
    A(f"  v_lshl_add_u32 {vr(vLr)}, {vr(vG)}, 6, {vr(vLr)}")
    A(f"  v_add_u32 {vr(vLr)}, s54, {vr(vLr)}")
    A(f"  s_lshl_b32 s54, s{sW}, 8")
    A(f"  s_add_u32 s54, s54, {SCB}")
    A(f"  v_lshl_add_u32 {vr(vSc)}, {vr(vG)}, 6, s54")
    A(f"  v_lshlrev_b32 {vr(vX)}, 6, {vr(vT)}")
    A(f"  v_lshrrev_b32 {vr(vY)}, 5, {vr(vT)}")
    A(f"  v_mul_u32_u24 {vr(vY)}, {ROW}, {vr(vY)}")
    A(f"  v_and_b32 {vr(vMn)}, 30, {vr(vT)}")
    A(f"  v_lshl_add_u32 {vr(vY)}, {vr(vMn)}, 3, {vr(vY)}")
    A(f"  v_and_b32 {vr(vMn)}, 1, {vr(vT)}")
    A(f"  v_lshl_add_u32 {vr(vY)}, {vr(vMn)}, 2, {vr(vY)}")
    A(f"  v_and_b32 {vr(vMn)}, 7, {vr(vC)}")
    A(f"  v_mul_u32_u24 {vr(vMn)}, {ROW}, {vr(vMn)}")
    A(f"  v_lshl_add_u32 {vr(vMn)}, {vr(vG)}, 6, {vr(vMn)}")
    for i in range(32):
        A(f"  v_mov_b32 {vr(O+i)}, 0")
    A(f"  v_mov_b32 {vr(vM)}, {f32(-3.0e38)}")
    A(f"  v_mov_b32 {vr(vL)}, 0")
    A(f"  s_mov_b32 s{sT}, {NT}")
    A(f"  s_waitcnt vmcnt({w_sc})")
    stamp()
    for e in range(4):
        for i in range(4):
            src = SR + 2*i + e // 2
            if e % 2 == 0:
                A(f"  v_lshlrev_b32 {vr(G+4*e+i)}, 16, {vr(src)}")
            else:
                A(f"  v_and_b32 {vr(G+4*e+i)}, 0xffff0000, {vr(src)}")
        A(f"  v_mul_f32 {vr(G+4*e+1)}, -{vr(G+4*e)}, {vr(G+4*e+1)}")
        A(f"  v_mul_f32 {vr(G+4*e+3)}, -{vr(G+4*e+2)}, {vr(G+4*e+3)}")
        A(f"  ds_write_b128 {vr(vX)}, {vr(G+4*e,4)} offset:{SCB+16*e}")
    A(f"  s_waitcnt vmcnt({w_q})")
    for e, sel in enumerate((sSelLo, sSelHi)):
        A(f"  v_perm_b32 {vr(F+e)}, {vr(QR+1)}, {vr(QR)}, s{sel}")
        A(f"  v_perm_b32 {vr(T+e)}, {vr(QR+4)}, {vr(QR+2)}, s{sel}")
        A(f"  v_perm_b32 {vr(T+2+e)}, {vr(QR+3)}, {vr(QR+5)}, s{sel}")
    for e in range(2):
        A(f"  v_dot2_f32_bf16 {vr(T+e)}, {vr(F+e)}, {vr(T+e)}, 0 neg_hi:[0,1,0]")
    for e in range(2):
        A(f"  v_dot2_f32_bf16 {vr(T+2+e)}, {vr(F+e)}, {vr(T+2+e)}, 0")
    A("  s_nop 2")
    A(f"  v_cvt_pk_bf16_f32 {vr(F)}, {vr(T)}, {vr(T+1)}")
    A(f"  v_cvt_pk_bf16_f32 {vr(F+1)}, {vr(T+2)}, {vr(T+3)}")
    A(f"  ds_write_b32 {vr(vY)}, {vr(F)} offset:{QB}")
    A(f"  ds_write_b32 {vr(vY)}, {vr(F+1)} offset:{QB+8}")
    A("  s_waitcnt lgkmcnt(0)")
    A("  s_barrier")
    def read_sc():
        for j in range(4):
            A(f"  ds_read_b128 {vr(SC+4*j,4)}, {vr(vSc)} offset:{16*j}")
        A(f"  v_add_u32 {vr(vSc)}, {256*NW}, {vr(vSc)}")
    read_sc()
    for i in range(4):
        A(f"  ds_read_b128 {vr(Q+4*i,4)}, {vr(vMn)} offset:{QB+16*i}")
    if stamps:
        A("  s_waitcnt vmcnt(26) lgkmcnt(0)")
        stamp()

    A("L_loop:")
    A(f"  s_cmp_eq_u32 s{sT}, 1")
    A("  s_cselect_b32 s34, 0, s34")
    A("  s_cselect_b32 s38, 0, s38")
    A("  s_cselect_b32 s42, 0, s42")
    A("  s_cselect_b32 s46, 0, s46")
    for j in range(4):
        kj, cj = K + 8*j, CS + 8*j
        A("  s_waitcnt vmcnt(26)" + (" lgkmcnt(0)" if j == 0 else ""))
        for i in range(8):
            A(f"  v_cvt_f32_i32 {vr(F+i)}, {vr(kj+i)}")
        for r in range(4):
            sel = sSelLo if r % 2 == 0 else sSelHi
            A(f"  v_perm_b32 {vr(T+r)}, {vr(cj+4+r//2)}, {vr(cj+r//2)}, s{sel}")
        for r in range(4):
            sel = sSelLo if r % 2 == 0 else sSelHi
            A(f"  v_perm_b32 {vr(T+4+r)}, {vr(cj+2+r//2)}, {vr(cj+6+r//2)}, s{sel}")
        load_k(j)
        for i in range(4):
            A(f"  v_pk_fma_f32 {vr(F+2*i,2)}, {vr(F+2*i,2)}, {vr(SC+4*j,2)}, {vr(SC+4*j,2)} op_sel:[0,0,1] op_sel_hi:[1,0,1]")
        for r in range(4):
            A(f"  v_cvt_pk_bf16_f32 {vr(F+r)}, {vr(F+r)}, {vr(F+4+r)}")
        for r in range(4):
            A(f"  v_dot2_f32_bf16 {vr(T+r)}, {vr(F+r)}, {vr(T+r)}, 0 neg_hi:[0,1,0]")
        for r in range(4):
            A(f"  v_dot2_f32_bf16 {vr(T+4+r)}, {vr(F+r)}, {vr(T+4+r)}, 0")
        for r in range(4):
            A(f"  v_cvt_pk_bf16_f32 {vr(W+r)}, {vr(T+2*r)}, {vr(T+2*r+1)}")
        A(f"  ds_write_b128 {vr(vLw)}, {vr(W,4)} offset:{ROW*j}")
    for i in range(4):
        A(f"  ds_read_b128 {vr(AF+4*i,4)}, {vr(vLr)} offset:{16*i}")
    def v_half(jp, mid=None):
        A("  s_waitcnt vmcnt(28)")
        for i in range(16):
            A(f"  v_cvt_f32_i32 {vr(G+i)}, {vr(V+16*jp+i)}")
        load_v(jp)
        if mid:
            mid()
        for e in range(2):
            j = 2*jp + e
            for i in range(4):
                A(f"  v_pk_fma_f32 {vr(G+8*e+2*i,2)}, {vr(G+8*e+2*i,2)}, {vr(SC+4*j+2,2)}, {vr(SC+4*j+2,2)} op_sel:[0,0,1] op_sel_hi:[1,0,1]")
        for i in range(8):
            A(f"  v_cvt_pk_bf16_f32 {vr(VA+2*i+jp)}, {vr(G+i)}, {vr(G+8+i)}")
    def qk():
        A("  s_waitcnt lgkmcnt(0)")
        for i in range(4):
            c = "0" if i == 0 else vr(S, 4)
            A(f"  v_mfma_f32_16x16x32_bf16 {vr(S,4)}, {vr(AF+4*i,4)}, {vr(Q+4*i,4)}, {c}")
    v_half(0, qk)
    A(f"  v_max3_f32 {vr(vX)}, {vr(S)}, {vr(S+1)}, {vr(S+2)}")
    A(f"  v_max_f32 {vr(vX)}, {vr(vX)}, {vr(S+3)}")
    A(f"  v_mov_b32 {vr(vY)}, {vr(vX)}")
    A("  s_nop 1")
    A(f"  v_permlane32_swap_b32 {vr(vX)}, {vr(vY)}")
    A(f"  v_max_f32 {vr(vX)}, {vr(vX)}, {vr(vY)}")
    A(f"  v_mov_b32 {vr(vY)}, {vr(vX)}")
    A("  s_nop 1")
    A(f"  v_permlane16_swap_b32 {vr(vX)}, {vr(vY)}")
    A(f"  v_max_f32 {vr(vX)}, {vr(vX)}, {vr(vY)}")
    A(f"  v_mul_f32 {vr(vX)}, s{sScale}, {vr(vX)}")
    A(f"  v_max_f32 {vr(vMn)}, {vr(vM)}, {vr(vX)}")
    A(f"  v_sub_f32 {vr(vAl)}, {vr(vM)}, {vr(vMn)}")
    for r in range(4):
        A(f"  v_fma_f32 {vr(S+r)}, {vr(S+r)}, s{sScale}, -{vr(vMn)}")
    A(f"  v_exp_f32 {vr(vAl)}, {vr(vAl)}")
    for r in range(4):
        A(f"  v_exp_f32 {vr(S+r)}, {vr(S+r)}")
    A(f"  v_mov_b32 {vr(vM)}, {vr(vMn)}")
    A(f"  v_fma_f32 {vr(vL)}, {vr(vL)}, {vr(vAl)}, {vr(S)}")
    A(f"  v_add_f32 {vr(vX)}, {vr(S+1)}, {vr(S+2)}")
    A(f"  v_add_f32 {vr(vL)}, {vr(vL)}, {vr(S+3)}")
    A(f"  v_cvt_pk_bf16_f32 {vr(P)}, {vr(S)}, {vr(S+1)}")
    A(f"  v_cvt_pk_bf16_f32 {vr(P+1)}, {vr(S+2)}, {vr(S+3)}")
    A(f"  v_add_f32 {vr(vL)}, {vr(vL)}, {vr(vX)}")
    for i in range(16):
        A(f"  v_pk_mul_f32 {vr(O+2*i,2)}, {vr(O+2*i,2)}, {vr(vAl,2)} op_sel_hi:[1,0]")
    v_half(1)
    read_sc()
    A(f"  s_add_u32 s{sK}, s{sK}, {8192*NW}")
    A(f"  s_add_u32 s{sC}, s{sC}, {4096*NW}")
    for i in range(8):
        A(f"  v_mfma_f32_16x16x16_bf16 {vr(O+4*i,4)}, {vr(VA+2*i,2)}, {vr(P,2)}, {vr(O+4*i,4)}")
    if stamps:
        A(f"  s_cmp_lg_u32 s{sT}, {NT}")
        A("  s_cbranch_scc1 L_nost")
        stamp()
        A("L_nost:")
    A(f"  s_sub_u32 s{sT}, s{sT}, 1")
    A(f"  s_cmp_lg_u32 s{sT}, 0")
    A("  s_cbranch_scc1 L_loop")

    stamp()
    A(f"  v_mov_b32 {vr(vY)}, {vr(vL)}")
    A(f"  v_cmp_lt_u32 vcc, 7, {vr(vC)}")
    A(f"  v_and_b32 {vr(vX)}, 7, {vr(vC)}")
    A(f"  v_permlane32_swap_b32 {vr(vL)}, {vr(vY)}")
    A(f"  v_add_f32 {vr(vL)}, {vr(vL)}, {vr(vY)}")
    A(f"  v_mov_b32 {vr(vY)}, {vr(vL)}")
    A(f"  s_mul_i32 s54, s{sW}, {WREG}")
    A(f"  v_mul_u32_u24 {vr(vLw)}, {OROW}, {vr(vX)}")
    A(f"  v_permlane16_swap_b32 {vr(vL)}, {vr(vY)}")
    A(f"  v_add_f32 {vr(vL)}, {vr(vL)}, {vr(vY)}")
    A(f"  v_lshl_add_u32 {vr(vLr)}, {vr(vX)}, 3, s54")
    A(f"  v_lshl_add_u32 {vr(vLw)}, {vr(vG)}, 6, {vr(vLw)}")
    A(f"  v_lshrrev_b32 {vr(vX)}, 3, {vr(vC)}")
    A(f"  v_lshl_add_u32 {vr(vLw)}, {vr(vX)}, 8, {vr(vLw)}")
    A(f"  v_add_u32 {vr(vLw)}, s54, {vr(vLw)}")
    A(f"  ds_write_b64 {vr(vLr)}, {vr(vM,2)} offset:{MLOFF}")
    for rho in range(4):
        for r in range(4):
            A(f"  v_cndmask_b32 {vr(G+4*rho+r)}, {vr(O+4*r+rho)}, {vr(O+16+4*r+rho)}, vcc")
        A(f"  ds_write_b128 {vr(vLw)}, {vr(G+4*rho,4)} offset:{16*rho}")
    A(f"  v_lshrrev_b32 {vr(vX)}, 5, {vr(vT)}")
    A(f"  v_and_b32 {vr(vY)}, 31, {vr(vT)}")
    A(f"  v_mul_u32_u24 {vr(vLr)}, {OROW}, {vr(vX)}")
    A(f"  v_lshl_add_u32 {vr(vLr)}, {vr(vY)}, 4, {vr(vLr)}")
    A(f"  v_lshlrev_b32 {vr(vSc)}, 3, {vr(vX)}")
    A(f"  v_mul_u32_u24 {vr(vCo)}, {REC}, {vr(vX)}")
    A(f"  v_lshl_add_u32 {vr(vKo)}, {vr(vY)}, 4, {vr(vCo)}")
    A("  s_waitcnt lgkmcnt(0)")
    A("  s_barrier")
    ML, OP = VA, AF
    for w in range(4):
        A(f"  ds_read_b64 {vr(ML+2*w,2)}, {vr(vSc)} offset:{MLOFF + w*WREG}")
    for w in range(4):
        A(f"  ds_read_b128 {vr(OP+4*w,4)}, {vr(vLr)} offset:{w*WREG}")
    A(f"  s_mul_i32 s54, s2, {8*REC}")
    A("  s_mov_b32 s56, s30")
    A("  s_mov_b32 s57, s31")
    A(f"  s_mov_b32 s58, {NWG*8*REC}")
    A("  s_mov_b32 s59, 0x20000")
    def merge(dst):
        A(f"  v_max3_f32 {vr(vM)}, {vr(ML)}, {vr(ML+2)}, {vr(ML+4)}")
        A(f"  v_max_f32 {vr(vM)}, {vr(vM)}, {vr(ML+6)}")
        for w in range(4):
            A(f"  v_sub_f32 {vr(ML+2*w)}, {vr(ML+2*w)}, {vr(vM)}")
        for w in range(4):
            A(f"  v_exp_f32 {vr(ML+2*w)}, {vr(ML+2*w)}")
        A(f"  v_mul_f32 {vr(vL)}, {vr(ML)}, {vr(ML+1)}")
        for w in range(1, 4):
            A(f"  v_fma_f32 {vr(vL)}, {vr(ML+2*w)}, {vr(ML+2*w+1)}, {vr(vL)}")
        A("  s_waitcnt lgkmcnt(0)")
        for r in range(2):
            A(f"  v_pk_mul_f32 {vr(dst+2*r,2)}, {vr(OP+2*r,2)}, {vr(ML,2)} op_sel_hi:[1,0]")
        for w in range(1, 4):
            for r in range(2):
                A(f"  v_pk_fma_f32 {vr(dst+2*r,2)}, {vr(OP+4*w+2*r,2)}, {vr(ML+2*w,2)}, {vr(dst+2*r,2)} op_sel_hi:[1,0,1]")
    A("  s_waitcnt lgkmcnt(4)")
    merge(F)
    A(f"  buffer_store_dwordx4 {vr(F,4)}, {vr(vKo)}, s[56:59], s54 offen {xpol}")
    A("  s_mov_b32 exec_lo, 1")
    A("  s_mov_b32 exec_hi, 1")
    A(f"  buffer_store_dwordx2 {vr(vM,2)}, {vr(vCo)}, s[56:59], s54 offen offset:512 {xpol}")
    A("  s_mov_b64 exec, -1")
    A("  s_mov_b32 s36, s26")
    A("  s_mov_b32 s37, s27")
    A(f"  s_mov_b32 s38, {64*8*128*2}")
    A("  s_lshr_b32 s55, s2, 2")
    A(f"  v_mov_b32 {vr(vX)}, {FLAG}")
    A("  s_waitcnt vmcnt(0)")
    stamp()
    A("  s_barrier")
    A(f"  s_cmp_lg_u32 s{sW}, 0")
    A("  s_cbranch_scc1 L_wait")
    A("  s_lshl_b32 s54, s55, 2")
    A(f"  v_mov_b32 {vr(vY)}, s54")
    A(f"  v_mov_b32 {vr(vMn)}, 1")
    A("  s_mov_b64 exec, 1")
    A(f"  global_atomic_add {vr(vMn)}, {vr(vY)}, {vr(vMn)}, s[28:29] sc0 sc1")
    A("  s_waitcnt vmcnt(0)")
    A(f"  ds_write_b32 {vr(vX)}, {vr(vMn)}")
    A("  s_mov_b64 exec, -1")
    A("  s_waitcnt lgkmcnt(0)")
    A("L_wait:")
    A("  s_barrier")
    A(f"  ds_read_b32 {vr(vY)}, {vr(vX)}")
    A(f"  s_mul_i32 s54, s55, {32*REC}")
    A("  s_waitcnt lgkmcnt(0)")
    A(f"  v_readfirstlane_b32 s62, {vr(vY)}")
    stamp()
    A("  s_nop 3")
    A("  s_cmp_lg_u32 s62, 3")
    A("  s_cbranch_scc1 L_done")
    for s in range(4):
        A(f"  buffer_load_dwordx2 {vr(ML+2*s,2)}, {vr(vCo)}, s[56:59], s54 offen offset:512 {xpol}")
        A(f"  buffer_load_dwordx4 {vr(OP+4*s,4)}, {vr(vKo)}, s[56:59], s54 offen {xpol}")
        if s < 3:
            A(f"  s_add_u32 s54, s54, {8*REC}")
    A(f"  s_lshl_b32 s54, s55, 11")
    A(f"  v_lshlrev_b32 {vr(vX)}, 3, {vr(vT)}")
    A("  s_waitcnt vmcnt(0)")
    merge(F)
    A(f"  v_rcp_f32 {vr(vAl)}, {vr(vL)}")
    A("  s_nop 0")
    for r in range(2):
        A(f"  v_pk_mul_f32 {vr(F+2*r,2)}, {vr(F+2*r,2)}, {vr(vAl,2)} op_sel_hi:[1,0]")
    A(f"  v_cvt_pk_bf16_f32 {vr(T)}, {vr(F)}, {vr(F+1)}")
    A(f"  v_cvt_pk_bf16_f32 {vr(T+1)}, {vr(F+2)}, {vr(F+3)}")
    A(f"  buffer_store_dwordx2 {vr(T,2)}, {vr(vX)}, s[36:39], s54 offen")
    A("L_done:")
    if stamps:
        A("  s_waitcnt vmcnt(0)")
        stamp()
        A("  s_waitcnt lgkmcnt(0)")
        A(f"  s_lshl_b32 s54, s2, 2")
        A(f"  s_add_u32 s54, s54, s{sW}")
        A(f"  s_lshl_b32 s54, s54, 6")
        A(f"  s_add_u32 s54, s54, {16<<20}")
        A(f"  s_mov_b32 s58, {32<<20}")
        for i in range(nstamp[0]):
            A(f"  v_mov_b32 {vr(G+i)}, s{64+2*i}")
        A(f"  v_mov_b32 {vr(G+15)}, s62")
        A("  s_getreg_b32 s62, hwreg(HW_REG_XCC_ID)")
        A(f"  v_mov_b32 {vr(G+14)}, s62")
        A("  s_mov_b64 exec, 1")
        for i in range(4):
            A(f"  buffer_store_dwordx4 {vr(G+4*i,4)}, off, s[56:59], s54 offset:{16*i}")
    if padto:
        A("L_pad:")
        A("  s_memrealtime s[62:63]")
        A("  s_waitcnt lgkmcnt(0)")
        A("  s_sub_u32 s62, s62, s60")
        A(f"  s_cmp_lt_u32 s62, {padto*100}")
        A("  s_cbranch_scc1 L_pad")
    A("L_end:")
    A("  s_endpgm")
    if codepf:
        A(f"  .fill {32*codepf*NW}, 4, 0xbf800000")
    A('.section .rodata,"a"')
    A(".p2align 6")
    A(f".amdhsa_kernel {kname}")
    A(f"  .amdhsa_next_free_vgpr {NV}")
    A(f"  .amdhsa_next_free_sgpr 96")
    A(f"  .amdhsa_accum_offset {(NV+3)//4*4}")
    A("  .amdhsa_group_segment_fixed_size 0")
    A("  .amdhsa_kernarg_size 112")
    A("  .amdhsa_user_sgpr_count 2")
    A("  .amdhsa_user_sgpr_kernarg_segment_ptr 1")
    A("  .amdhsa_system_sgpr_workgroup_id_x 1")
    A("  .amdhsa_float_denorm_mode_32 3")
    A(".end_amdhsa_kernel")
    return "\n".join(L) + "\n"

if __name__ == "__main__":
    out = sys.argv[1]
    kw = dict(a.split("=", 1) for a in sys.argv[2:])
    for k in list(kw):
        if kw[k] in ("True", "False"):
            kw[k] = kw[k] == "True"
    open(out, "w").write(gen(**kw))
```

```python
import sys, struct, math

NAME = "standalone__kv_cache_quant_pre_rope_vs_post_rope__sampling"
HEADER = open("cdna_kernels/%s.s.ref" % NAME).read().split("; Override launch")[0]

def f32(x):
    return "0x%08x" % struct.unpack("<I", struct.pack("<f", x))[0]

class Regs:
    def __init__(self, start):
        self.n = start
    def alloc(self, cnt, align=1):
        self.n = (self.n + align - 1) // align * align
        r = self.n
        self.n += cnt
        return r

def vr(a, n=1):
    return f"v{a}" if n == 1 else f"v[{a}:{a+n-1}]"

def schedule(body, loads, gaps):
    out, pending, since = [], [], 99
    for it in body:
        if isinstance(it, tuple):
            if it[0] == "free":
                pending += [(it[1], t) for t in loads[it[1]]]
            elif it[0] == "drain":
                out += [("load",) + p for p in pending]
                pending = []
            else:
                out.append(it)
        else:
            out.append(it)
            since += 1
        while pending and since >= gaps[pending[0][0][0]]:
            out.append(("load",) + pending.pop(0))
            since = 0
    assert not pending
    seq = [o[1] for o in out if isinstance(o, tuple) and o[0] == "load"]
    total = len(seq)
    res, seen = [], 0
    for o in out:
        if isinstance(o, tuple) and o[0] == "load":
            res.append(o[2]); seen += 1
        elif isinstance(o, tuple):
            last = max(i for i, g in enumerate(seq) if g == o[1])
            assert min(i for i, g in enumerate(seq) if g == o[1]) >= seen
            res.append(f"  s_waitcnt vmcnt({total - 1 - last + seen}){o[2]}")
        else:
            res.append(o)
    return res, seq

def gen(kvpol="nt", cspol="", rot=2, outpol="", smallpol="", stamps=False, padto=0, codepf=0, xpol="sc0 sc1",
        gapk=0, gapv=0, epi="atomic"):
    padto, codepf, rot, gapk, gapv = int(padto), int(codepf), int(rot), int(gapk), int(gapv)
    NW = 4
    NWG = 256
    NT = 16
    ROW = 272
    WREG = 16 * ROW
    SCB = NW * WREG
    QB = SCB + 1024 * 16 + 1024
    FLAG = QB + 8 * ROW
    LDS = FLAG + 16
    OROW = 528
    MLOFF = 8 * OROW
    REC = 640
    kname = NAME + "_kernel"
    L = []
    A = L.append
    A(HEADER.rstrip("\n"))
    A(f"; @launch grid=({NWG},1,1) block=({NW*64},1,1) lds={LDS}")
    A('.amdgcn_target "amdgcn-amd-amdhsa--gfx950"')
    A(".text")
    A(f".globl {kname}")
    A(".p2align 8")
    A(f".type {kname},@function")
    A(f"{kname}:")

    R = Regs(1)
    vT = 0
    vC, vG = R.alloc(1), R.alloc(1)
    vKo, vCo, vLw, vLr, vSc = (R.alloc(1) for _ in range(5))
    vM = R.alloc(2, 2)
    vL = vM + 1
    vAl = R.alloc(2, 2)
    vMn = R.alloc(1)
    vX, vY = R.alloc(1), R.alloc(1)
    K = R.alloc(32, 4)
    CS = R.alloc(32, 4)
    V = R.alloc(32, 4)
    SC = R.alloc(16, 4)
    Q = R.alloc(16, 4)
    O = R.alloc(32, 4)
    F = R.alloc(8, 4)
    T = R.alloc(8, 4)
    W = R.alloc(4, 4)
    G = R.alloc(16, 4)
    VA = R.alloc(16, 4)
    AF = R.alloc(16, 4)
    S = R.alloc(4, 4)
    P = R.alloc(2, 2)
    NV = R.n
    sK, sC, sT, sW = 48, 49, 50, 3
    sSelLo, sSelHi, sScale, sHead, sHb, sOff = 51, 52, 53, 60, 61, 62
    nstamp = [0]
    def stamp(B=None):
        if stamps:
            (B.append if B is not None else A)(f"  s_memrealtime s[{66+2*nstamp[0]}:{67+2*nstamp[0]}]")
            nstamp[0] += 1

    def ld_k(j):
        return [f"  buffer_load_dwordx4 {vr(K+8*j+4*h,4)}, {vr(vKo)}, s[32:35], s{sK} offen offset:{512*j+256*h} {kvpol}" for h in range(2)]
    def ld_cs(j):
        return [f"  buffer_load_dwordx2 {vr(CS+8*j+4*t+2*h,2)}, {vr(vCo)}, s[{40+4*t}:{43+4*t}], s{sC} offen offset:{256*j+128*h} {cspol}"
                for t in range(2) for h in range(2)]
    def ld_v(jp):
        return [f"  buffer_load_dwordx4 {vr(V+8*j+4*h,4)}, {vr(vKo)}, s[36:39], s{sK} offen offset:{512*j+256*h} {kvpol}"
                for j in (2*jp, 2*jp+1) for h in range(2)]
    def advance(B):
        B.append(f"  s_add_u32 s{sOff}, s{sOff}, 0x20000")
        B.append(f"  s_and_b32 s{sOff}, s{sOff}, 0x1fffff")
        B.append(f"  s_add_u32 s{sK}, s{sOff}, s{sHb}")
        B.append(f"  s_lshr_b32 s{sC}, s{sOff}, 1")

    A("  s_load_dwordx16 s[4:19], s[0:1], 0")
    A("  s_load_dwordx8 s[20:27], s[0:1], 64")
    A("  s_load_dwordx4 s[28:31], s[0:1], 96")
    if codepf:
        A("  s_getpc_b64 s[56:57]")
        for i in range(codepf):
            A(f"  s_load_dword s58, s[56:57], {256*(i+1)}")
    if padto:
        A("  s_memrealtime s[64:65]")
    stamp()
    A(f"  s_cmpk_ge_u32 s2, {NWG}")
    A("  s_cbranch_scc1 L_end")
    A(f"  v_readfirstlane_b32 s{sW}, v0")
    A(f"  v_and_b32 {vr(vC)}, 15, v0")
    A(f"  v_bfe_u32 {vr(vG)}, v0, 4, 2")
    A(f"  v_lshlrev_b32 {vr(vKo)}, 4, {vr(vC)}")
    A(f"  v_lshl_add_u32 {vr(vKo)}, {vr(vG)}, 11, {vr(vKo)}")
    A(f"  s_lshr_b32 s{sW}, s{sW}, 6")
    A("  s_andn2_b32 s54, s2, 15")
    A("  s_and_b32 s55, s2, 3")
    A("  s_lshl2_add_u32 s54, s55, s54")
    A(f"  s_add_u32 s54, s54, s{sW}")
    A(f"  s_lshl_b32 s{sOff}, s54, 13")
    A(f"  s_lshr_b32 s{sHead}, s2, 2")
    A(f"  s_lshl_b32 s{sHb}, s{sHead}, 21")
    A(f"  s_add_u32 s{sK}, s{sOff}, s{sHb}")
    A("  s_mov_b32 s34, 0x8000000")
    A("  s_mov_b32 s35, 0x20000")
    A("  s_waitcnt lgkmcnt(0)")
    A("  s_mov_b64 s[32:33], s[6:7]")
    for j in range(4):
        L.extend(ld_k(j))
    stamp()
    A(f"  s_lshr_b32 s54, s2, 4")
    A(f"  v_lshrrev_b32 {vr(vX)}, 4, {vr(vT)}")
    A(f"  v_add_u32 {vr(vX)}, s54, {vr(vX)}")
    A(f"  v_and_b32 {vr(vX)}, 15, {vr(vX)}")
    A(f"  v_lshlrev_b32 {vr(vX)}, 9, {vr(vX)}")
    A(f"  v_lshl_add_u32 {vr(vX)}, {vr(vC)}, 3, {vr(vX)}")
    A(f"  s_lshl_b32 s54, s{sHead}, 13")
    A("  s_lshl_b32 s55, s55, 7")
    A("  s_add_u32 s54, s54, s55")
    A(f"  v_add_u32 {vr(vX)}, s54, {vr(vX)}")
    A(f"  v_lshrrev_b32 {vr(vY)}, 5, {vr(vT)}")
    A(f"  v_lshlrev_b32 {vr(vY)}, 8, {vr(vY)}")
    A(f"  v_and_b32 {vr(vMn)}, 31, {vr(vT)}")
    A(f"  v_lshl_add_u32 {vr(vY)}, {vr(vMn)}, 2, {vr(vY)}")
    A(f"  s_lshl_b32 s55, s{sHead}, 11")
    A("  s_add_u32 s4, s4, s55")
    A("  s_addc_u32 s5, s5, 0")
    SR, QR = AF, AF + 8
    for i, p in enumerate((8, 10, 14, 16)):
        A(f"  global_load_dwordx2 {vr(SR+2*i,2)}, {vr(vX)}, s[{p}:{p+1}] {smallpol}")
    for i, p in enumerate((4, 18, 20)):
        for h in range(2):
            A(f"  global_load_dword {vr(QR+2*i+h)}, {vr(vY)}, s[{p}:{p+1}] offset:{128*h} {smallpol}")
    A(f"  v_lshrrev_b32 {vr(vCo)}, 1, {vr(vKo)}")
    A(f"  s_lshr_b32 s{sC}, s{sOff}, 1")
    A("  s_mov_b64 s[40:41], s[22:23]")
    A("  s_mov_b32 s42, 0x100000")
    A("  s_mov_b32 s43, 0x20000")
    A("  s_mov_b64 s[44:45], s[24:25]")
    A("  s_mov_b32 s46, 0x100000")
    A("  s_mov_b32 s47, 0x20000")
    A("  s_mov_b64 s[36:37], s[12:13]")
    A("  s_mov_b32 s38, 0x8000000")
    A("  s_mov_b32 s39, 0x20000")
    setup = []
    B = setup.append
    B(f"  s_mov_b32 s{sSelLo}, 0x05040100")
    B(f"  s_mov_b32 s{sSelHi}, 0x07060302")
    B(f"  s_mov_b32 s{sScale}, {f32(math.log2(math.e) / math.sqrt(128.0))}")
    B(f"  s_mul_i32 s54, s{sW}, {WREG}")
    B(f"  v_mul_u32_u24 {vr(vLw)}, {4*ROW}, {vr(vG)}")
    B(f"  v_lshl_add_u32 {vr(vLw)}, {vr(vC)}, 4, {vr(vLw)}")
    B(f"  v_add_u32 {vr(vLw)}, s54, {vr(vLw)}")
    B(f"  v_mul_u32_u24 {vr(vLr)}, {ROW}, {vr(vC)}")
    B(f"  v_lshl_add_u32 {vr(vLr)}, {vr(vG)}, 6, {vr(vLr)}")
    B(f"  v_add_u32 {vr(vLr)}, s54, {vr(vLr)}")
    B(f"  s_lshl_b32 s54, s{sW}, 8")
    B(f"  s_add_u32 s54, s54, {SCB}")
    B(f"  v_lshl_add_u32 {vr(vSc)}, {vr(vG)}, 6, s54")
    B(f"  v_lshlrev_b32 {vr(vX)}, 6, {vr(vT)}")
    B(f"  v_lshrrev_b32 {vr(vY)}, 5, {vr(vT)}")
    B(f"  v_mul_u32_u24 {vr(vY)}, {ROW}, {vr(vY)}")
    B(f"  v_and_b32 {vr(vMn)}, 30, {vr(vT)}")
    B(f"  v_lshl_add_u32 {vr(vY)}, {vr(vMn)}, 3, {vr(vY)}")
    B(f"  v_and_b32 {vr(vMn)}, 1, {vr(vT)}")
    B(f"  v_lshl_add_u32 {vr(vY)}, {vr(vMn)}, 2, {vr(vY)}")
    B(f"  v_and_b32 {vr(vMn)}, 7, {vr(vC)}")
    B(f"  v_mul_u32_u24 {vr(vMn)}, {ROW}, {vr(vMn)}")
    B(f"  v_lshl_add_u32 {vr(vMn)}, {vr(vG)}, 6, {vr(vMn)}")
    for i in range(32):
        B(f"  v_mov_b32 {vr(O+i)}, 0")
    B(f"  v_mov_b32 {vr(vM)}, {f32(-3.0e38)}")
    B(f"  v_mov_b32 {vr(vL)}, 0")
    B(f"  s_mov_b32 s{sT}, {NT}")
    cs_all = [t for j in range(4) for t in ld_cs(j)]
    for i, t in enumerate(cs_all):
        A(t)
        L.extend(setup[4*i:4*i+4])
    assert len(setup) <= 64
    stamp()
    v0l = ld_v(0)
    A(f"  s_waitcnt vmcnt({16+6})")
    stamp()
    for e in range(4):
        A(v0l[e])
        for i in range(4):
            src = SR + 2*i + e // 2
            if e % 2 == 0:
                A(f"  v_lshlrev_b32 {vr(G+4*e+i)}, 16, {vr(src)}")
            else:
                A(f"  v_and_b32 {vr(G+4*e+i)}, 0xffff0000, {vr(src)}")
        A(f"  v_mul_f32 {vr(G+4*e+1)}, -{vr(G+4*e)}, {vr(G+4*e+1)}")
        A(f"  v_mul_f32 {vr(G+4*e+3)}, -{vr(G+4*e+2)}, {vr(G+4*e+3)}")
        A(f"  ds_write_b128 {vr(vX)}, {vr(G+4*e,4)} offset:{SCB+16*e}")
    A(f"  s_waitcnt vmcnt({16+4})")
    for e, sel in enumerate((sSelLo, sSelHi)):
        A(f"  v_perm_b32 {vr(F+e)}, {vr(QR+1)}, {vr(QR)}, s{sel}")
        A(f"  v_perm_b32 {vr(T+e)}, {vr(QR+4)}, {vr(QR+2)}, s{sel}")
        A(f"  v_perm_b32 {vr(T+2+e)}, {vr(QR+3)}, {vr(QR+5)}, s{sel}")
    for e in range(2):
        A(f"  v_dot2_f32_bf16 {vr(T+e)}, {vr(F+e)}, {vr(T+e)}, 0 neg_hi:[0,1,0]")
    for e in range(2):
        A(f"  v_dot2_f32_bf16 {vr(T+2+e)}, {vr(F+e)}, {vr(T+2+e)}, 0")
    A("  s_nop 2")
    A(f"  v_cvt_pk_bf16_f32 {vr(F)}, {vr(T)}, {vr(T+1)}")
    A(f"  v_cvt_pk_bf16_f32 {vr(F+1)}, {vr(T+2)}, {vr(T+3)}")
    A(f"  ds_write_b32 {vr(vY)}, {vr(F)} offset:{QB}")
    A(f"  ds_write_b32 {vr(vY)}, {vr(F+1)} offset:{QB+8}")
    A("  s_waitcnt lgkmcnt(0)")
    A("  s_barrier")
    def read_sc(B):
        for j in range(4):
            B.append(f"  ds_read_b128 {vr(SC+4*j,4)}, {vr(vSc)} offset:{16*j}")
        B.append(f"  v_add_u32 {vr(vSc)}, {256*NW}, {vr(vSc)}")
    read_sc(L)
    for i in range(4):
        A(f"  ds_read_b128 {vr(Q+4*i,4)}, {vr(vMn)} offset:{QB+16*i}")
    L.extend(ld_v(1))
    advance(L)
    A("  s_waitcnt vmcnt(8)")
    stamp()

    body = []
    B = body.append
    B(f"  s_cmp_eq_u32 s{sT}, 1")
    B("  s_cselect_b32 s34, 0, s34")
    B("  s_cselect_b32 s38, 0, s38")
    B("  s_cselect_b32 s42, 0, s42")
    B("  s_cselect_b32 s46, 0, s46")
    for j in range(4):
        kj, cj = K + 8*j, CS + 8*j
        B(("wait", f"c{j}", " lgkmcnt(0)" if j == 0 else ""))
        for i in range(8):
            B(f"  v_cvt_f32_i32 {vr(F+i)}, {vr(kj+i)}")
        B(("free", f"k{j}"))
        for r in range(4):
            sel = sSelLo if r % 2 == 0 else sSelHi
            B(f"  v_perm_b32 {vr(T+r)}, {vr(cj+4+r//2)}, {vr(cj+r//2)}, s{sel}")
        for r in range(4):
            sel = sSelLo if r % 2 == 0 else sSelHi
            B(f"  v_perm_b32 {vr(T+4+r)}, {vr(cj+2+r//2)}, {vr(cj+6+r//2)}, s{sel}")
        B(("free", f"c{j}"))
        for i in range(4):
            B(f"  v_pk_fma_f32 {vr(F+2*i,2)}, {vr(F+2*i,2)}, {vr(SC+4*j,2)}, {vr(SC+4*j,2)} op_sel:[0,0,1] op_sel_hi:[1,0,1]")
        for r in range(4):
            B(f"  v_cvt_pk_bf16_f32 {vr(F+r)}, {vr(F+r)}, {vr(F+4+r)}")
        for r in range(4):
            B(f"  v_dot2_f32_bf16 {vr(T+r)}, {vr(F+r)}, {vr(T+r)}, 0 neg_hi:[0,1,0]")
        for r in range(4):
            B(f"  v_dot2_f32_bf16 {vr(T+4+r)}, {vr(F+r)}, {vr(T+4+r)}, 0")
        for r in range(4):
            B(f"  v_cvt_pk_bf16_f32 {vr(W+r)}, {vr(T+2*r)}, {vr(T+2*r+1)}")
        B(f"  ds_write_b128 {vr(vLw)}, {vr(W,4)} offset:{ROW*j}")
    for i in range(4):
        B(f"  ds_read_b128 {vr(AF+4*i,4)}, {vr(vLr)} offset:{16*i}")
    def v_half(jp, mid=None):
        B(("wait", f"v{jp}", ""))
        for i in range(16):
            B(f"  v_cvt_f32_i32 {vr(G+i)}, {vr(V+16*jp+i)}")
        B(("free", f"v{jp}"))
        if mid:
            mid()
        for e in range(2):
            j = 2*jp + e
            for i in range(4):
                B(f"  v_pk_fma_f32 {vr(G+8*e+2*i,2)}, {vr(G+8*e+2*i,2)}, {vr(SC+4*j+2,2)}, {vr(SC+4*j+2,2)} op_sel:[0,0,1] op_sel_hi:[1,0,1]")
        for i in range(8):
            B(f"  v_cvt_pk_bf16_f32 {vr(VA+2*i+jp)}, {vr(G+i)}, {vr(G+8+i)}")
    def qk():
        B("  s_waitcnt lgkmcnt(0)")
        for i in range(4):
            c = "0" if i == 0 else vr(S, 4)
            B(f"  v_mfma_f32_16x16x32_bf16 {vr(S,4)}, {vr(AF+4*i,4)}, {vr(Q+4*i,4)}, {c}")
    v_half(0, qk)
    B(f"  v_max3_f32 {vr(vX)}, {vr(S)}, {vr(S+1)}, {vr(S+2)}")
    B(f"  v_max_f32 {vr(vX)}, {vr(vX)}, {vr(S+3)}")
    B(f"  v_mov_b32 {vr(vY)}, {vr(vX)}")
    B("  s_nop 1")
    B(f"  v_permlane32_swap_b32 {vr(vX)}, {vr(vY)}")
    B(f"  v_max_f32 {vr(vX)}, {vr(vX)}, {vr(vY)}")
    B(f"  v_mov_b32 {vr(vY)}, {vr(vX)}")
    B("  s_nop 1")
    B(f"  v_permlane16_swap_b32 {vr(vX)}, {vr(vY)}")
    B(f"  v_max_f32 {vr(vX)}, {vr(vX)}, {vr(vY)}")
    B(f"  v_mul_f32 {vr(vX)}, s{sScale}, {vr(vX)}")
    B(f"  v_max_f32 {vr(vMn)}, {vr(vM)}, {vr(vX)}")
    B(f"  v_sub_f32 {vr(vAl)}, {vr(vM)}, {vr(vMn)}")
    for r in range(4):
        B(f"  v_fma_f32 {vr(S+r)}, {vr(S+r)}, s{sScale}, -{vr(vMn)}")
    B(f"  v_exp_f32 {vr(vAl)}, {vr(vAl)}")
    for r in range(4):
        B(f"  v_exp_f32 {vr(S+r)}, {vr(S+r)}")
    B(f"  v_mov_b32 {vr(vM)}, {vr(vMn)}")
    B(f"  v_fma_f32 {vr(vL)}, {vr(vL)}, {vr(vAl)}, {vr(S)}")
    B(f"  v_add_f32 {vr(vX)}, {vr(S+1)}, {vr(S+2)}")
    B(f"  v_add_f32 {vr(vL)}, {vr(vL)}, {vr(S+3)}")
    B(f"  v_cvt_pk_bf16_f32 {vr(P)}, {vr(S)}, {vr(S+1)}")
    B(f"  v_cvt_pk_bf16_f32 {vr(P+1)}, {vr(S+2)}, {vr(S+3)}")
    B(f"  v_add_f32 {vr(vL)}, {vr(vL)}, {vr(vX)}")
    for i in range(16):
        B(f"  v_pk_mul_f32 {vr(O+2*i,2)}, {vr(O+2*i,2)}, {vr(vAl,2)} op_sel_hi:[1,0]")
    v_half(1)
    read_sc(body)
    for i in range(8):
        B(f"  v_mfma_f32_16x16x16_bf16 {vr(O+4*i,4)}, {vr(VA+2*i,2)}, {vr(P,2)}, {vr(O+4*i,4)}")
    B(("drain",))
    advance(body)
    loads = {}
    for j in range(4):
        loads[f"k{j}"] = ld_k(j)
        loads[f"c{j}"] = ld_cs(j)
    for jp in range(2):
        loads[f"v{jp}"] = ld_v(jp)
    code, seq = schedule(body, loads, {"k": gapk, "c": gapk, "v": gapv})
    assert seq[-8:] == ["v0"] * 4 + ["v1"] * 4
    A("L_loop:")
    L.extend(code)
    if stamps:
        A(f"  s_cmp_lg_u32 s{sT}, {NT}")
        A("  s_cbranch_scc1 L_nost")
        stamp()
        A("L_nost:")
    A(f"  s_sub_u32 s{sT}, s{sT}, 1")
    A(f"  s_cmp_lg_u32 s{sT}, 0")
    A("  s_cbranch_scc1 L_loop")

    stamp()
    A(f"  v_mov_b32 {vr(vY)}, {vr(vL)}")
    A(f"  v_cmp_lt_u32 vcc, 7, {vr(vC)}")
    A(f"  v_and_b32 {vr(vX)}, 7, {vr(vC)}")
    A(f"  v_permlane32_swap_b32 {vr(vL)}, {vr(vY)}")
    A(f"  v_add_f32 {vr(vL)}, {vr(vL)}, {vr(vY)}")
    A(f"  v_mov_b32 {vr(vY)}, {vr(vL)}")
    A(f"  s_mul_i32 s54, s{sW}, {WREG}")
    A(f"  v_mul_u32_u24 {vr(vLw)}, {OROW}, {vr(vX)}")
    A(f"  v_permlane16_swap_b32 {vr(vL)}, {vr(vY)}")
    A(f"  v_add_f32 {vr(vL)}, {vr(vL)}, {vr(vY)}")
    A(f"  v_lshl_add_u32 {vr(vLr)}, {vr(vX)}, 3, s54")
    A(f"  v_lshl_add_u32 {vr(vLw)}, {vr(vG)}, 6, {vr(vLw)}")
    A(f"  v_lshrrev_b32 {vr(vX)}, 3, {vr(vC)}")
    A(f"  v_lshl_add_u32 {vr(vLw)}, {vr(vX)}, 8, {vr(vLw)}")
    A(f"  v_add_u32 {vr(vLw)}, s54, {vr(vLw)}")
    A(f"  ds_write_b64 {vr(vLr)}, {vr(vM,2)} offset:{MLOFF}")
    for rho in range(4):
        for r in range(4):
            A(f"  v_cndmask_b32 {vr(G+4*rho+r)}, {vr(O+4*r+rho)}, {vr(O+16+4*r+rho)}, vcc")
        A(f"  ds_write_b128 {vr(vLw)}, {vr(G+4*rho,4)} offset:{16*rho}")
    A(f"  v_lshrrev_b32 {vr(vX)}, 5, {vr(vT)}")
    A(f"  v_and_b32 {vr(vY)}, 31, {vr(vT)}")
    A(f"  v_mul_u32_u24 {vr(vLr)}, {OROW}, {vr(vX)}")
    A(f"  v_lshl_add_u32 {vr(vLr)}, {vr(vY)}, 4, {vr(vLr)}")
    A(f"  v_lshlrev_b32 {vr(vSc)}, 3, {vr(vX)}")
    A(f"  v_mul_u32_u24 {vr(vCo)}, {REC}, {vr(vX)}")
    A(f"  v_lshl_add_u32 {vr(vKo)}, {vr(vY)}, 4, {vr(vCo)}")
    A("  s_waitcnt lgkmcnt(0)")
    A("  s_barrier")
    ML, OP = VA, AF
    for w in range(4):
        A(f"  ds_read_b64 {vr(ML+2*w,2)}, {vr(vSc)} offset:{MLOFF + w*WREG}")
    for w in range(4):
        A(f"  ds_read_b128 {vr(OP+4*w,4)}, {vr(vLr)} offset:{w*WREG}")
    A(f"  s_mul_i32 s54, s2, {8*REC}")
    A("  s_mov_b64 s[56:57], s[30:31]")
    A(f"  s_mov_b32 s58, {NWG*8*REC}")
    A("  s_mov_b32 s59, 0x20000")
    def merge(dst):
        A(f"  v_max3_f32 {vr(vM)}, {vr(ML)}, {vr(ML+2)}, {vr(ML+4)}")
        A(f"  v_max_f32 {vr(vM)}, {vr(vM)}, {vr(ML+6)}")
        for w in range(4):
            A(f"  v_sub_f32 {vr(ML+2*w)}, {vr(ML+2*w)}, {vr(vM)}")
        for w in range(4):
            A(f"  v_exp_f32 {vr(ML+2*w)}, {vr(ML+2*w)}")
        A(f"  v_mul_f32 {vr(vL)}, {vr(ML)}, {vr(ML+1)}")
        for w in range(1, 4):
            A(f"  v_fma_f32 {vr(vL)}, {vr(ML+2*w)}, {vr(ML+2*w+1)}, {vr(vL)}")
        A("  s_waitcnt lgkmcnt(0)")
        for r in range(2):
            A(f"  v_pk_mul_f32 {vr(dst+2*r,2)}, {vr(OP+2*r,2)}, {vr(ML,2)} op_sel_hi:[1,0]")
        for w in range(1, 4):
            for r in range(2):
                A(f"  v_pk_fma_f32 {vr(dst+2*r,2)}, {vr(OP+4*w+2*r,2)}, {vr(ML+2*w,2)}, {vr(dst+2*r,2)} op_sel_hi:[1,0,1]")
    A("  s_waitcnt lgkmcnt(4)")
    merge(F)
    A(f"  buffer_store_dwordx4 {vr(F,4)}, {vr(vKo)}, s[56:59], s54 offen {xpol}")
    A("  s_mov_b32 exec_lo, 1")
    A("  s_mov_b32 exec_hi, 1")
    A(f"  buffer_store_dwordx2 {vr(vM,2)}, {vr(vCo)}, s[56:59], s54 offen offset:512 {xpol}")
    A("  s_mov_b64 exec, -1")
    A("  s_mov_b64 s[36:37], s[26:27]")
    A(f"  s_mov_b32 s38, {64*8*128*2}")
    A(f"  v_mov_b32 {vr(vX)}, {FLAG}")
    A("  s_waitcnt vmcnt(0)")
    stamp()
    A("  s_barrier")
    A(f"  s_cmp_lg_u32 s{sW}, 0")
    A("  s_cbranch_scc1 L_wait")
    A(f"  s_lshl_b32 s54, s{sHead}, 2")
    A(f"  v_mov_b32 {vr(vY)}, s54")
    A(f"  v_mov_b32 {vr(vMn)}, 1")
    A("  s_mov_b64 exec, 1")
    A(f"  global_atomic_add {vr(vMn)}, {vr(vY)}, {vr(vMn)}, s[28:29] sc0 sc1")
    A("  s_waitcnt vmcnt(0)")
    A(f"  ds_write_b32 {vr(vX)}, {vr(vMn)}")
    A("  s_mov_b64 exec, -1")
    A("  s_waitcnt lgkmcnt(0)")
    A("L_wait:")
    A("  s_barrier")
    A(f"  ds_read_b32 {vr(vY)}, {vr(vX)}")
    A(f"  s_mul_i32 s54, s{sHead}, {32*REC}")
    A("  s_waitcnt lgkmcnt(0)")
    A(f"  v_readfirstlane_b32 s63, {vr(vY)}")
    stamp()
    A("  s_nop 3")
    A("  s_cmp_lg_u32 s63, 3")
    A("  s_cbranch_scc1 L_done")
    for s in range(4):
        A(f"  buffer_load_dwordx2 {vr(ML+2*s,2)}, {vr(vCo)}, s[56:59], s54 offen offset:512 {xpol}")
        A(f"  buffer_load_dwordx4 {vr(OP+4*s,4)}, {vr(vKo)}, s[56:59], s54 offen {xpol}")
        if s < 3:
            A(f"  s_add_u32 s54, s54, {8*REC}")
    A(f"  s_lshl_b32 s54, s{sHead}, 11")
    A(f"  v_lshlrev_b32 {vr(vX)}, 3, {vr(vT)}")
    A("  s_waitcnt vmcnt(0)")
    merge(F)
    A(f"  v_rcp_f32 {vr(vAl)}, {vr(vL)}")
    A("  s_nop 0")
    for r in range(2):
        A(f"  v_pk_mul_f32 {vr(F+2*r,2)}, {vr(F+2*r,2)}, {vr(vAl,2)} op_sel_hi:[1,0]")
    A(f"  v_cvt_pk_bf16_f32 {vr(T)}, {vr(F)}, {vr(F+1)}")
    A(f"  v_cvt_pk_bf16_f32 {vr(T+1)}, {vr(F+2)}, {vr(F+3)}")
    A(f"  buffer_store_dwordx2 {vr(T,2)}, {vr(vX)}, s[36:39], s54 offen {outpol}")
    A("L_done:")
    if stamps:
        A("  s_waitcnt vmcnt(0)")
        stamp()
        A("  s_waitcnt lgkmcnt(0)")
        A(f"  s_lshl_b32 s54, s2, 2")
        A(f"  s_add_u32 s54, s54, s{sW}")
        A(f"  s_lshl_b32 s54, s54, 6")
        A(f"  s_add_u32 s54, s54, {16<<20}")
        A(f"  s_mov_b32 s58, {32<<20}")
        for i in range(nstamp[0]):
            A(f"  v_mov_b32 {vr(G+i)}, s{66+2*i}")
        A(f"  v_mov_b32 {vr(G+15)}, s63")
        A("  s_getreg_b32 s63, hwreg(HW_REG_XCC_ID)")
        A(f"  v_mov_b32 {vr(G+14)}, s63")
        A("  s_mov_b64 exec, 1")
        for i in range(4):
            A(f"  buffer_store_dwordx4 {vr(G+4*i,4)}, off, s[56:59], s54 offset:{16*i}")
    if padto:
        A("L_pad:")
        A("  s_memrealtime s[66:67]")
        A("  s_waitcnt lgkmcnt(0)")
        A("  s_sub_u32 s66, s66, s64")
        A(f"  s_cmp_lt_u32 s66, {padto*100}")
        A("  s_cbranch_scc1 L_pad")
    A("L_end:")
    A("  s_endpgm")
    A('.section .rodata,"a"')
    A(".p2align 6")
    A(f".amdhsa_kernel {kname}")
    A(f"  .amdhsa_next_free_vgpr {NV}")
    A(f"  .amdhsa_next_free_sgpr 96")
    A(f"  .amdhsa_accum_offset {(NV+3)//4*4}")
    A("  .amdhsa_group_segment_fixed_size 0")
    A("  .amdhsa_kernarg_size 112")
    A("  .amdhsa_user_sgpr_count 2")
    A("  .amdhsa_user_sgpr_kernarg_segment_ptr 1")
    A("  .amdhsa_system_sgpr_workgroup_id_x 1")
    A("  .amdhsa_float_denorm_mode_32 3")
    A(".end_amdhsa_kernel")
    return "\n".join(L) + "\n"

if __name__ == "__main__":
    out = sys.argv[1]
    kw = dict(a.split("=", 1) for a in sys.argv[2:])
    for k in list(kw):
        if kw[k] in ("True", "False"):
            kw[k] = kw[k] == "True"
    open(out, "w").write(gen(**kw))
```

```python
import sys, struct, math

NAME = "standalone__kv_cache_quant_pre_rope_vs_post_rope__sampling"
HEADER = open("cdna_kernels/%s.s.ref" % NAME).read().split("; Override launch")[0]

def f32(x):
    return "0x%08x" % struct.unpack("<I", struct.pack("<f", x))[0]

class Regs:
    def __init__(self, start):
        self.n = start
    def alloc(self, cnt, align=1):
        self.n = (self.n + align - 1) // align * align
        r = self.n
        self.n += cnt
        return r

def vr(a, n=1):
    return f"v{a}" if n == 1 else f"v[{a}:{a+n-1}]"

def gen(kvpol="nt", cspol="", rot=2, outpol="", smallpol="", stamps=False, padto=0, codepf=0, smallfirst=True, xpol="sc0 sc1"):
    padto, codepf, rot = int(padto), int(codepf), int(rot)
    NW = 4
    NWG = 256
    NT = 1024 // 16 // NW
    ROW = 272
    WREG = 16 * ROW
    SCB = NW * WREG
    QB = SCB + 1024 * 16 + 1024
    FLAG = QB + 8 * ROW
    LDS = FLAG + 16
    OROW = 528
    MLOFF = 8 * OROW
    REC = 640
    kname = NAME + "_kernel"
    L = []
    A = L.append
    A(HEADER.rstrip("\n"))
    A(f"; @launch grid=({NWG},1,1) block=({NW*64},1,1) lds={LDS}")
    A('.amdgcn_target "amdgcn-amd-amdhsa--gfx950"')
    A(".text")
    A(f".globl {kname}")
    A(".p2align 8")
    A(f".type {kname},@function")
    A(f"{kname}:")

    R = Regs(1)
    vC, vG = R.alloc(1), R.alloc(1)
    vKo, vCo, vLw, vLr, vSc = (R.alloc(1) for _ in range(5))
    vM = R.alloc(2, 2)
    vL = vM + 1
    vAl = R.alloc(2, 2)
    vMn = R.alloc(1)
    vX, vY, vT = R.alloc(1), R.alloc(1), R.alloc(1)
    K = R.alloc(32, 4)
    CS = R.alloc(32, 4)
    V = R.alloc(32, 4)
    SC = R.alloc(16, 4)
    Q = R.alloc(16, 4)
    O = R.alloc(32, 4)
    F = R.alloc(8, 4)
    T = R.alloc(8, 4)
    W = R.alloc(4, 4)
    G = R.alloc(16, 4)
    VA = R.alloc(16, 4)
    AF = R.alloc(16, 4)
    S = R.alloc(4, 4)
    P = R.alloc(2, 2)
    NV = R.n
    sK, sC, sT, sW = 48, 49, 50, 3
    sSelLo, sSelHi, sScale = 51, 52, 53
    nstamp = [0]
    def stamp():
        if stamps:
            A(f"  s_memrealtime s[{64+2*nstamp[0]}:{65+2*nstamp[0]}]")
            nstamp[0] += 1

    A(f"  s_cmp_ge_u32 s2, {NWG}")
    A("  s_cbranch_scc1 L_end")
    A("  s_load_dwordx16 s[4:19], s[0:1], 0")
    A("  s_load_dwordx8 s[20:27], s[0:1], 64")
    A("  s_load_dwordx4 s[28:31], s[0:1], 96")
    if padto:
        A("  s_memrealtime s[60:61]")
    stamp()
    A(f"  v_lshrrev_b32 {vr(vX)}, 6, v0")
    A(f"  v_mov_b32 {vr(vT)}, v0")
    A(f"  v_readfirstlane_b32 s{sW}, {vr(vX)}")
    A("  v_and_b32 v0, 63, v0")
    A(f"  v_and_b32 {vr(vC)}, 15, v0")
    A(f"  v_lshrrev_b32 {vr(vG)}, 4, v0")
    A(f"  v_lshlrev_b32 {vr(vKo)}, 4, {vr(vC)}")
    A(f"  v_lshl_add_u32 {vr(vKo)}, {vr(vG)}, 11, {vr(vKo)}")
    A(f"  v_lshrrev_b32 {vr(vCo)}, 1, {vr(vKo)}")
    A(f"  s_lshr_b32 s56, s2, {2+rot}")
    A("  s_and_b32 s56, s56, 15")
    A("  s_and_b32 s57, s2, 3")
    A(f"  s_lshl_b32 s{sK}, s56, 2")
    A(f"  s_add_u32 s{sK}, s{sK}, s57")
    A(f"  s_lshl_b32 s{sK}, s{sK}, 2")
    A(f"  s_add_u32 s{sK}, s{sK}, s{sW}")
    A(f"  s_lshl_b32 s{sK}, s{sK}, 13")
    A(f"  s_lshr_b32 s{sC}, s{sK}, 1")
    A(f"  v_lshrrev_b32 {vr(vX)}, 4, {vr(vT)}")
    A(f"  v_add_u32 {vr(vX)}, s56, {vr(vX)}")
    A(f"  v_and_b32 {vr(vX)}, 15, {vr(vX)}")
    A(f"  v_lshlrev_b32 {vr(vX)}, 9, {vr(vX)}")
    A(f"  v_lshl_add_u32 {vr(vX)}, {vr(vC)}, 3, {vr(vX)}")
    A("  s_lshr_b32 s58, s2, 2")
    A("  s_lshl_b32 s54, s58, 13")
    A("  s_lshl_b32 s57, s57, 7")
    A("  s_add_u32 s54, s54, s57")
    A(f"  v_add_u32 {vr(vX)}, s54, {vr(vX)}")
    A("  s_lshl_b32 s58, s58, 21")
    A(f"  v_lshrrev_b32 {vr(vY)}, 5, {vr(vT)}")
    A(f"  v_lshlrev_b32 {vr(vY)}, 8, {vr(vY)}")
    A(f"  v_and_b32 {vr(vMn)}, 31, {vr(vT)}")
    A(f"  v_lshl_add_u32 {vr(vY)}, {vr(vMn)}, 2, {vr(vY)}")
    A(f"  s_lshr_b32 s55, s2, 2")
    A(f"  s_lshl_b32 s55, s55, 11")
    A("  s_mov_b32 s34, 0x200000")
    A("  s_mov_b32 s35, 0x20000")
    A("  s_mov_b32 s38, 0x200000")
    A("  s_mov_b32 s39, 0x20000")
    A("  s_mov_b32 s42, 0x100000")
    A("  s_mov_b32 s43, 0x20000")
    A("  s_mov_b32 s46, 0x100000")
    A("  s_mov_b32 s47, 0x20000")
    A("  s_waitcnt lgkmcnt(0)")
    stamp()
    A("  s_add_u32 s4, s4, s55")
    A("  s_addc_u32 s5, s5, 0")
    A("  s_add_u32 s32, s6, s58")
    A("  s_addc_u32 s33, s7, 0")
    A("  s_add_u32 s36, s12, s58")
    A("  s_addc_u32 s37, s13, 0")
    A("  s_mov_b32 s40, s22")
    A("  s_mov_b32 s41, s23")
    A("  s_mov_b32 s44, s24")
    A("  s_mov_b32 s45, s25")
    SR, QR = AF, AF + 8
    def small_loads():
        for i, p in enumerate((8, 10, 14, 16)):
            A(f"  global_load_dwordx2 {vr(SR+2*i,2)}, {vr(vX)}, s[{p}:{p+1}] {smallpol}")
        for i, p in enumerate((4, 18, 20)):
            for h in range(2):
                A(f"  global_load_dword {vr(QR+2*i+h)}, {vr(vY)}, s[{p}:{p+1}] offset:{128*h} {smallpol}")
    def load_k(j):
        for h in range(2):
            A(f"  buffer_load_dwordx4 {vr(K+8*j+4*h,4)}, {vr(vKo)}, s[32:35], s{sK} offen offset:{512*j+256*h} {kvpol}")
        for h in range(2):
            A(f"  buffer_load_dwordx2 {vr(CS+8*j+2*h,2)}, {vr(vCo)}, s[40:43], s{sC} offen offset:{256*j+128*h} {cspol}")
        for h in range(2):
            A(f"  buffer_load_dwordx2 {vr(CS+8*j+4+2*h,2)}, {vr(vCo)}, s[44:47], s{sC} offen offset:{256*j+128*h} {cspol}")
    def load_v(jp):
        for j in (2*jp, 2*jp+1):
            for h in range(2):
                A(f"  buffer_load_dwordx4 {vr(V+8*j+4*h,4)}, {vr(vKo)}, s[36:39], s{sK} offen offset:{512*j+256*h} {kvpol}")
    def code_prefetch():
        A("  s_getpc_b64 s[56:57]")
        A(f"  s_mul_i32 s54, s{sW}, {128*codepf}")
        A("  s_add_u32 s56, s56, s54")
        A("  s_addc_u32 s57, s57, 0")
        for i in range(codepf):
            A(f"  s_load_dword s58, s[56:57], {128*i}")
    if codepf:
        code_prefetch()
    if smallfirst:
        small_loads()
        for j in range(4):
            load_k(j)
        load_v(0); load_v(1)
        w_sc, w_q = 32 + 6, 32
    else:
        load_k(0)
        small_loads()
        for j in range(1, 4):
            load_k(j)
        load_v(0); load_v(1)
        w_sc, w_q = 26 + 6, 26
    stamp()
    A(f"  s_add_u32 s{sK}, s{sK}, 0x20000")
    A(f"  s_and_b32 s{sK}, s{sK}, 0x1fffff")
    A(f"  s_lshr_b32 s{sC}, s{sK}, 1")
    A(f"  s_mov_b32 s{sSelLo}, 0x05040100")
    A(f"  s_mov_b32 s{sSelHi}, 0x07060302")
    A(f"  s_mov_b32 s{sScale}, {f32(math.log2(math.e) / math.sqrt(128.0))}")
    A(f"  s_mul_i32 s54, s{sW}, {WREG}")
    A(f"  v_mul_u32_u24 {vr(vLw)}, {4*ROW}, {vr(vG)}")
    A(f"  v_lshl_add_u32 {vr(vLw)}, {vr(vC)}, 4, {vr(vLw)}")
    A(f"  v_add_u32 {vr(vLw)}, s54, {vr(vLw)}")
    A(f"  v_mul_u32_u24 {vr(vLr)}, {ROW}, {vr(vC)}")
    A(f"  v_lshl_add_u32 {vr(vLr)}, {vr(vG)}, 6, {vr(vLr)}")
    A(f"  v_add_u32 {vr(vLr)}, s54, {vr(vLr)}")
    A(f"  s_lshl_b32 s54, s{sW}, 8")
    A(f"  s_add_u32 s54, s54, {SCB}")
    A(f"  v_lshl_add_u32 {vr(vSc)}, {vr(vG)}, 6, s54")
    A(f"  v_lshlrev_b32 {vr(vX)}, 6, {vr(vT)}")
    A(f"  v_lshrrev_b32 {vr(vY)}, 5, {vr(vT)}")
    A(f"  v_mul_u32_u24 {vr(vY)}, {ROW}, {vr(vY)}")
    A(f"  v_and_b32 {vr(vMn)}, 30, {vr(vT)}")
    A(f"  v_lshl_add_u32 {vr(vY)}, {vr(vMn)}, 3, {vr(vY)}")
    A(f"  v_and_b32 {vr(vMn)}, 1, {vr(vT)}")
    A(f"  v_lshl_add_u32 {vr(vY)}, {vr(vMn)}, 2, {vr(vY)}")
    A(f"  v_and_b32 {vr(vMn)}, 7, {vr(vC)}")
    A(f"  v_mul_u32_u24 {vr(vMn)}, {ROW}, {vr(vMn)}")
    A(f"  v_lshl_add_u32 {vr(vMn)}, {vr(vG)}, 6, {vr(vMn)}")
    for i in range(32):
        A(f"  v_mov_b32 {vr(O+i)}, 0")
    A(f"  v_mov_b32 {vr(vM)}, {f32(-3.0e38)}")
    A(f"  v_mov_b32 {vr(vL)}, 0")
    A(f"  s_mov_b32 s{sT}, {NT}")
    A(f"  s_waitcnt vmcnt({w_sc})")
    stamp()
    for e in range(4):
        for i in range(4):
            src = SR + 2*i + e // 2
            if e % 2 == 0:
                A(f"  v_lshlrev_b32 {vr(G+4*e+i)}, 16, {vr(src)}")
            else:
                A(f"  v_and_b32 {vr(G+4*e+i)}, 0xffff0000, {vr(src)}")
        A(f"  v_mul_f32 {vr(G+4*e+1)}, -{vr(G+4*e)}, {vr(G+4*e+1)}")
        A(f"  v_mul_f32 {vr(G+4*e+3)}, -{vr(G+4*e+2)}, {vr(G+4*e+3)}")
        A(f"  ds_write_b128 {vr(vX)}, {vr(G+4*e,4)} offset:{SCB+16*e}")
    A(f"  s_waitcnt vmcnt({w_q})")
    for e, sel in enumerate((sSelLo, sSelHi)):
        A(f"  v_perm_b32 {vr(F+e)}, {vr(QR+1)}, {vr(QR)}, s{sel}")
        A(f"  v_perm_b32 {vr(T+e)}, {vr(QR+4)}, {vr(QR+2)}, s{sel}")
        A(f"  v_perm_b32 {vr(T+2+e)}, {vr(QR+3)}, {vr(QR+5)}, s{sel}")
    for e in range(2):
        A(f"  v_dot2_f32_bf16 {vr(T+e)}, {vr(F+e)}, {vr(T+e)}, 0 neg_hi:[0,1,0]")
    for e in range(2):
        A(f"  v_dot2_f32_bf16 {vr(T+2+e)}, {vr(F+e)}, {vr(T+2+e)}, 0")
    A("  s_nop 2")
    A(f"  v_cvt_pk_bf16_f32 {vr(F)}, {vr(T)}, {vr(T+1)}")
    A(f"  v_cvt_pk_bf16_f32 {vr(F+1)}, {vr(T+2)}, {vr(T+3)}")
    A(f"  ds_write_b32 {vr(vY)}, {vr(F)} offset:{QB}")
    A(f"  ds_write_b32 {vr(vY)}, {vr(F+1)} offset:{QB+8}")
    A("  s_waitcnt lgkmcnt(0)")
    A("  s_barrier")
    def read_sc():
        for j in range(4):
            A(f"  ds_read_b128 {vr(SC+4*j,4)}, {vr(vSc)} offset:{16*j}")
        A(f"  v_add_u32 {vr(vSc)}, {256*NW}, {vr(vSc)}")
    read_sc()
    for i in range(4):
        A(f"  ds_read_b128 {vr(Q+4*i,4)}, {vr(vMn)} offset:{QB+16*i}")
    if stamps:
        A("  s_waitcnt vmcnt(26) lgkmcnt(0)")
        stamp()

    A("L_loop:")
    A(f"  s_cmp_eq_u32 s{sT}, 1")
    A("  s_cselect_b32 s34, 0, s34")
    A("  s_cselect_b32 s38, 0, s38")
    A("  s_cselect_b32 s42, 0, s42")
    A("  s_cselect_b32 s46, 0, s46")
    for j in range(4):
        kj, cj = K + 8*j, CS + 8*j
        A("  s_waitcnt vmcnt(26)" + (" lgkmcnt(0)" if j == 0 else ""))
        for i in range(8):
            A(f"  v_cvt_f32_i32 {vr(F+i)}, {vr(kj+i)}")
        for r in range(4):
            sel = sSelLo if r % 2 == 0 else sSelHi
            A(f"  v_perm_b32 {vr(T+r)}, {vr(cj+4+r//2)}, {vr(cj+r//2)}, s{sel}")
        for r in range(4):
            sel = sSelLo if r % 2 == 0 else sSelHi
            A(f"  v_perm_b32 {vr(T+4+r)}, {vr(cj+2+r//2)}, {vr(cj+6+r//2)}, s{sel}")
        load_k(j)
        for i in range(4):
            A(f"  v_pk_fma_f32 {vr(F+2*i,2)}, {vr(F+2*i,2)}, {vr(SC+4*j,2)}, {vr(SC+4*j,2)} op_sel:[0,0,1] op_sel_hi:[1,0,1]")
        for r in range(4):
            A(f"  v_cvt_pk_bf16_f32 {vr(F+r)}, {vr(F+r)}, {vr(F+4+r)}")
        for r in range(4):
            A(f"  v_dot2_f32_bf16 {vr(T+r)}, {vr(F+r)}, {vr(T+r)}, 0 neg_hi:[0,1,0]")
        for r in range(4):
            A(f"  v_dot2_f32_bf16 {vr(T+4+r)}, {vr(F+r)}, {vr(T+4+r)}, 0")
        for r in range(4):
            A(f"  v_cvt_pk_bf16_f32 {vr(W+r)}, {vr(T+2*r)}, {vr(T+2*r+1)}")
        A(f"  ds_write_b128 {vr(vLw)}, {vr(W,4)} offset:{ROW*j}")
    for i in range(4):
        A(f"  ds_read_b128 {vr(AF+4*i,4)}, {vr(vLr)} offset:{16*i}")
    def v_half(jp, mid=None):
        A("  s_waitcnt vmcnt(28)")
        for i in range(16):
            A(f"  v_cvt_f32_i32 {vr(G+i)}, {vr(V+16*jp+i)}")
        load_v(jp)
        if mid:
            mid()
        for e in range(2):
            j = 2*jp + e
            for i in range(4):
                A(f"  v_pk_fma_f32 {vr(G+8*e+2*i,2)}, {vr(G+8*e+2*i,2)}, {vr(SC+4*j+2,2)}, {vr(SC+4*j+2,2)} op_sel:[0,0,1] op_sel_hi:[1,0,1]")
        for i in range(8):
            A(f"  v_cvt_pk_bf16_f32 {vr(VA+2*i+jp)}, {vr(G+i)}, {vr(G+8+i)}")
    def qk():
        A("  s_waitcnt lgkmcnt(0)")
        for i in range(4):
            c = "0" if i == 0 else vr(S, 4)
            A(f"  v_mfma_f32_16x16x32_bf16 {vr(S,4)}, {vr(AF+4*i,4)}, {vr(Q+4*i,4)}, {c}")
    v_half(0, qk)
    A(f"  v_max3_f32 {vr(vX)}, {vr(S)}, {vr(S+1)}, {vr(S+2)}")
    A(f"  v_max_f32 {vr(vX)}, {vr(vX)}, {vr(S+3)}")
    A(f"  v_mov_b32 {vr(vY)}, {vr(vX)}")
    A("  s_nop 1")
    A(f"  v_permlane32_swap_b32 {vr(vX)}, {vr(vY)}")
    A(f"  v_max_f32 {vr(vX)}, {vr(vX)}, {vr(vY)}")
    A(f"  v_mov_b32 {vr(vY)}, {vr(vX)}")
    A("  s_nop 1")
    A(f"  v_permlane16_swap_b32 {vr(vX)}, {vr(vY)}")
    A(f"  v_max_f32 {vr(vX)}, {vr(vX)}, {vr(vY)}")
    A(f"  v_mul_f32 {vr(vX)}, s{sScale}, {vr(vX)}")
    A(f"  v_max_f32 {vr(vMn)}, {vr(vM)}, {vr(vX)}")
    A(f"  v_sub_f32 {vr(vAl)}, {vr(vM)}, {vr(vMn)}")
    for r in range(4):
        A(f"  v_fma_f32 {vr(S+r)}, {vr(S+r)}, s{sScale}, -{vr(vMn)}")
    A(f"  v_exp_f32 {vr(vAl)}, {vr(vAl)}")
    for r in range(4):
        A(f"  v_exp_f32 {vr(S+r)}, {vr(S+r)}")
    A(f"  v_mov_b32 {vr(vM)}, {vr(vMn)}")
    A(f"  v_fma_f32 {vr(vL)}, {vr(vL)}, {vr(vAl)}, {vr(S)}")
    A(f"  v_add_f32 {vr(vX)}, {vr(S+1)}, {vr(S+2)}")
    A(f"  v_add_f32 {vr(vL)}, {vr(vL)}, {vr(S+3)}")
    A(f"  v_cvt_pk_bf16_f32 {vr(P)}, {vr(S)}, {vr(S+1)}")
    A(f"  v_cvt_pk_bf16_f32 {vr(P+1)}, {vr(S+2)}, {vr(S+3)}")
    A(f"  v_add_f32 {vr(vL)}, {vr(vL)}, {vr(vX)}")
    for i in range(16):
        A(f"  v_pk_mul_f32 {vr(O+2*i,2)}, {vr(O+2*i,2)}, {vr(vAl,2)} op_sel_hi:[1,0]")
    v_half(1)
    read_sc()
    A(f"  s_add_u32 s{sK}, s{sK}, 0x20000")
    A(f"  s_and_b32 s{sK}, s{sK}, 0x1fffff")
    A(f"  s_lshr_b32 s{sC}, s{sK}, 1")
    for i in range(8):
        A(f"  v_mfma_f32_16x16x16_bf16 {vr(O+4*i,4)}, {vr(VA+2*i,2)}, {vr(P,2)}, {vr(O+4*i,4)}")
    if stamps:
        A(f"  s_cmp_lg_u32 s{sT}, {NT}")
        A("  s_cbranch_scc1 L_nost")
        stamp()
        A("L_nost:")
    A(f"  s_sub_u32 s{sT}, s{sT}, 1")
    A(f"  s_cmp_lg_u32 s{sT}, 0")
    A("  s_cbranch_scc1 L_loop")

    stamp()
    A(f"  v_mov_b32 {vr(vY)}, {vr(vL)}")
    A(f"  v_cmp_lt_u32 vcc, 7, {vr(vC)}")
    A(f"  v_and_b32 {vr(vX)}, 7, {vr(vC)}")
    A(f"  v_permlane32_swap_b32 {vr(vL)}, {vr(vY)}")
    A(f"  v_add_f32 {vr(vL)}, {vr(vL)}, {vr(vY)}")
    A(f"  v_mov_b32 {vr(vY)}, {vr(vL)}")
    A(f"  s_mul_i32 s54, s{sW}, {WREG}")
    A(f"  v_mul_u32_u24 {vr(vLw)}, {OROW}, {vr(vX)}")
    A(f"  v_permlane16_swap_b32 {vr(vL)}, {vr(vY)}")
    A(f"  v_add_f32 {vr(vL)}, {vr(vL)}, {vr(vY)}")
    A(f"  v_lshl_add_u32 {vr(vLr)}, {vr(vX)}, 3, s54")
    A(f"  v_lshl_add_u32 {vr(vLw)}, {vr(vG)}, 6, {vr(vLw)}")
    A(f"  v_lshrrev_b32 {vr(vX)}, 3, {vr(vC)}")
    A(f"  v_lshl_add_u32 {vr(vLw)}, {vr(vX)}, 8, {vr(vLw)}")
    A(f"  v_add_u32 {vr(vLw)}, s54, {vr(vLw)}")
    A(f"  ds_write_b64 {vr(vLr)}, {vr(vM,2)} offset:{MLOFF}")
    for rho in range(4):
        for r in range(4):
            A(f"  v_cndmask_b32 {vr(G+4*rho+r)}, {vr(O+4*r+rho)}, {vr(O+16+4*r+rho)}, vcc")
        A(f"  ds_write_b128 {vr(vLw)}, {vr(G+4*rho,4)} offset:{16*rho}")
    A(f"  v_lshrrev_b32 {vr(vX)}, 5, {vr(vT)}")
    A(f"  v_and_b32 {vr(vY)}, 31, {vr(vT)}")
    A(f"  v_mul_u32_u24 {vr(vLr)}, {OROW}, {vr(vX)}")
    A(f"  v_lshl_add_u32 {vr(vLr)}, {vr(vY)}, 4, {vr(vLr)}")
    A(f"  v_lshlrev_b32 {vr(vSc)}, 3, {vr(vX)}")
    A(f"  v_mul_u32_u24 {vr(vCo)}, {REC}, {vr(vX)}")
    A(f"  v_lshl_add_u32 {vr(vKo)}, {vr(vY)}, 4, {vr(vCo)}")
    A("  s_waitcnt lgkmcnt(0)")
    A("  s_barrier")
    ML, OP = VA, AF
    for w in range(4):
        A(f"  ds_read_b64 {vr(ML+2*w,2)}, {vr(vSc)} offset:{MLOFF + w*WREG}")
    for w in range(4):
        A(f"  ds_read_b128 {vr(OP+4*w,4)}, {vr(vLr)} offset:{w*WREG}")
    A(f"  s_mul_i32 s54, s2, {8*REC}")
    A("  s_mov_b32 s56, s30")
    A("  s_mov_b32 s57, s31")
    A(f"  s_mov_b32 s58, {NWG*8*REC}")
    A("  s_mov_b32 s59, 0x20000")
    def merge(dst):
        A(f"  v_max3_f32 {vr(vM)}, {vr(ML)}, {vr(ML+2)}, {vr(ML+4)}")
        A(f"  v_max_f32 {vr(vM)}, {vr(vM)}, {vr(ML+6)}")
        for w in range(4):
            A(f"  v_sub_f32 {vr(ML+2*w)}, {vr(ML+2*w)}, {vr(vM)}")
        for w in range(4):
            A(f"  v_exp_f32 {vr(ML+2*w)}, {vr(ML+2*w)}")
        A(f"  v_mul_f32 {vr(vL)}, {vr(ML)}, {vr(ML+1)}")
        for w in range(1, 4):
            A(f"  v_fma_f32 {vr(vL)}, {vr(ML+2*w)}, {vr(ML+2*w+1)}, {vr(vL)}")
        A("  s_waitcnt lgkmcnt(0)")
        for r in range(2):
            A(f"  v_pk_mul_f32 {vr(dst+2*r,2)}, {vr(OP+2*r,2)}, {vr(ML,2)} op_sel_hi:[1,0]")
        for w in range(1, 4):
            for r in range(2):
                A(f"  v_pk_fma_f32 {vr(dst+2*r,2)}, {vr(OP+4*w+2*r,2)}, {vr(ML+2*w,2)}, {vr(dst+2*r,2)} op_sel_hi:[1,0,1]")
    A("  s_waitcnt lgkmcnt(4)")
    merge(F)
    A(f"  buffer_store_dwordx4 {vr(F,4)}, {vr(vKo)}, s[56:59], s54 offen {xpol}")
    A("  s_mov_b32 exec_lo, 1")
    A("  s_mov_b32 exec_hi, 1")
    A(f"  buffer_store_dwordx2 {vr(vM,2)}, {vr(vCo)}, s[56:59], s54 offen offset:512 {xpol}")
    A("  s_mov_b64 exec, -1")
    A("  s_mov_b32 s36, s26")
    A("  s_mov_b32 s37, s27")
    A(f"  s_mov_b32 s38, {64*8*128*2}")
    A("  s_lshr_b32 s55, s2, 2")
    A(f"  v_mov_b32 {vr(vX)}, {FLAG}")
    A("  s_waitcnt vmcnt(0)")
    stamp()
    A("  s_barrier")
    A(f"  s_cmp_lg_u32 s{sW}, 0")
    A("  s_cbranch_scc1 L_wait")
    A("  s_lshl_b32 s54, s55, 2")
    A(f"  v_mov_b32 {vr(vY)}, s54")
    A(f"  v_mov_b32 {vr(vMn)}, 1")
    A("  s_mov_b64 exec, 1")
    A(f"  global_atomic_add {vr(vMn)}, {vr(vY)}, {vr(vMn)}, s[28:29] sc0 sc1")
    A("  s_waitcnt vmcnt(0)")
    A(f"  ds_write_b32 {vr(vX)}, {vr(vMn)}")
    A("  s_mov_b64 exec, -1")
    A("  s_waitcnt lgkmcnt(0)")
    A("L_wait:")
    A("  s_barrier")
    A(f"  ds_read_b32 {vr(vY)}, {vr(vX)}")
    A(f"  s_mul_i32 s54, s55, {32*REC}")
    A("  s_waitcnt lgkmcnt(0)")
    A(f"  v_readfirstlane_b32 s62, {vr(vY)}")
    stamp()
    A("  s_nop 3")
    A("  s_cmp_lg_u32 s62, 3")
    A("  s_cbranch_scc1 L_done")
    for s in range(4):
        A(f"  buffer_load_dwordx2 {vr(ML+2*s,2)}, {vr(vCo)}, s[56:59], s54 offen offset:512 {xpol}")
        A(f"  buffer_load_dwordx4 {vr(OP+4*s,4)}, {vr(vKo)}, s[56:59], s54 offen {xpol}")
        if s < 3:
            A(f"  s_add_u32 s54, s54, {8*REC}")
    A(f"  s_lshl_b32 s54, s55, 11")
    A(f"  v_lshlrev_b32 {vr(vX)}, 3, {vr(vT)}")
    A("  s_waitcnt vmcnt(0)")
    merge(F)
    A(f"  v_rcp_f32 {vr(vAl)}, {vr(vL)}")
    A("  s_nop 0")
    for r in range(2):
        A(f"  v_pk_mul_f32 {vr(F+2*r,2)}, {vr(F+2*r,2)}, {vr(vAl,2)} op_sel_hi:[1,0]")
    A(f"  v_cvt_pk_bf16_f32 {vr(T)}, {vr(F)}, {vr(F+1)}")
    A(f"  v_cvt_pk_bf16_f32 {vr(T+1)}, {vr(F+2)}, {vr(F+3)}")
    A(f"  buffer_store_dwordx2 {vr(T,2)}, {vr(vX)}, s[36:39], s54 offen {outpol}")
    A("L_done:")
    if stamps:
        A("  s_waitcnt vmcnt(0)")
        stamp()
        A("  s_waitcnt lgkmcnt(0)")
        A(f"  s_lshl_b32 s54, s2, 2")
        A(f"  s_add_u32 s54, s54, s{sW}")
        A(f"  s_lshl_b32 s54, s54, 6")
        A(f"  s_add_u32 s54, s54, {16<<20}")
        A(f"  s_mov_b32 s58, {32<<20}")
        for i in range(nstamp[0]):
            A(f"  v_mov_b32 {vr(G+i)}, s{64+2*i}")
        A(f"  v_mov_b32 {vr(G+15)}, s62")
        A("  s_getreg_b32 s62, hwreg(HW_REG_XCC_ID)")
        A(f"  v_mov_b32 {vr(G+14)}, s62")
        A("  s_mov_b64 exec, 1")
        for i in range(4):
            A(f"  buffer_store_dwordx4 {vr(G+4*i,4)}, off, s[56:59], s54 offset:{16*i}")
    if padto:
        A("L_pad:")
        A("  s_memrealtime s[62:63]")
        A("  s_waitcnt lgkmcnt(0)")
        A("  s_sub_u32 s62, s62, s60")
        A(f"  s_cmp_lt_u32 s62, {padto*100}")
        A("  s_cbranch_scc1 L_pad")
    A("L_end:")
    A("  s_endpgm")
    if codepf:
        A(f"  .fill {32*codepf*NW}, 4, 0xbf800000")
    A('.section .rodata,"a"')
    A(".p2align 6")
    A(f".amdhsa_kernel {kname}")
    A(f"  .amdhsa_next_free_vgpr {NV}")
    A(f"  .amdhsa_next_free_sgpr 96")
    A(f"  .amdhsa_accum_offset {(NV+3)//4*4}")
    A("  .amdhsa_group_segment_fixed_size 0")
    A("  .amdhsa_kernarg_size 112")
    A("  .amdhsa_user_sgpr_count 2")
    A("  .amdhsa_user_sgpr_kernarg_segment_ptr 1")
    A("  .amdhsa_system_sgpr_workgroup_id_x 1")
    A("  .amdhsa_float_denorm_mode_32 3")
    A(".end_amdhsa_kernel")
    return "\n".join(L) + "\n"

if __name__ == "__main__":
    out = sys.argv[1]
    kw = dict(a.split("=", 1) for a in sys.argv[2:])
    for k in list(kw):
        if kw[k] in ("True", "False"):
            kw[k] = kw[k] == "True"
    open(out, "w").write(gen(**kw))
```

```python
import sys, struct, math

NAME = "standalone__kv_cache_quant_pre_rope_vs_post_rope__sampling"
HEADER = open("cdna_kernels/%s.s.ref" % NAME).read().split("; Override launch")[0]

def f32(x):
    return "0x%08x" % struct.unpack("<I", struct.pack("<f", x))[0]

class Regs:
    def __init__(self, start):
        self.n = start
    def alloc(self, cnt, align=1):
        self.n = (self.n + align - 1) // align * align
        r = self.n
        self.n += cnt
        return r

def vr(a, n=1):
    return f"v{a}" if n == 1 else f"v[{a}:{a+n-1}]"

DOC = """\
;
%s; The four splits of a head meet in d_ws.  Wave 4 fills the workgroup's records with -1 and then reports by changing
;   go-ahead a counter in d_debug picks the last of the four instead."""

TABDOC = """\
"""

def gen(kvpol="nt", cspol="", outpol="", smallpol="", stamps=False, padto=0, xpol="sc1", himask=255, force=0, slotk=3, slotstride=4352, polls=24, specpos=2):
    padto, himask, force, slotk, slotstride, polls = int(padto), int(himask), int(force), int(slotk), int(slotstride), int(polls)
    specpos = int(specpos)
    hashi = lambda j, t: (himask >> (2*j + t)) & 1
    NW = 4
    NWG = 256
    NT = 16
    ROW = 272
    WREG = 16 * ROW
    SCB = NW * WREG
    QB = SCB + 1024 * 16 + 1024
    LDS = QB + 8 * ROW
    OROW = 528
    MLOFF = 8 * OROW
    REC = 640
    SLOTS = NWG * 8 * REC
    WSUSE = SLOTS + (NWG >> slotk) * slotstride
    OKOFF = 252
    kname = NAME + "_kernel"
    L = []
    A = L.append
    A(HEADER.rstrip("\n"))
    A(f"; @launch grid=({NWG},1,1) block=({NW*64+64},1,1) lds={LDS}")
    A(DOC % (TABDOC if himask != 255 else ''))
    A('.amdgcn_target "amdgcn-amd-amdhsa--gfx950"')
    A(".text")
    A(f".globl {kname}")
    A(".p2align 8")
    A(f".type {kname},@function")
    A(f"{kname}:")

    R = Regs(1)
    vT = 0
    vC, vG = R.alloc(1), R.alloc(1)
    vKo, vCo, vLw, vLr, vSc = (R.alloc(1) for _ in range(5))
    vM = R.alloc(2, 2)
    vL = vM + 1
    vAl = R.alloc(2, 2)
    vMn = R.alloc(1)
    vX, vY, vRa = R.alloc(1), R.alloc(1), R.alloc(1)
    K = R.alloc(32, 4)
    CS = R.alloc(32, 4)
    V = R.alloc(32, 4)
    SC = R.alloc(16, 4)
    Q = R.alloc(16, 4)
    O = R.alloc(32, 4)
    F = R.alloc(8, 4)
    T = R.alloc(8, 4)
    W = R.alloc(4, 4)
    G = R.alloc(16, 4)
    VA = R.alloc(16, 4)
    AF = R.alloc(16, 4)
    S = R.alloc(4, 4)
    P = R.alloc(2, 2)
    vRb, vEw, vEm, vEr, vEs = (R.alloc(1) for _ in range(5))
    NV = R.n
    assert NV <= 256
    sK, sC, sT, sW = 48, 49, 50, 3
    sSelLo, sSelHi, sScale, sHead, sHb, sOff, sCp = 51, 52, 53, 60, 61, 62, 63
    sRec = 64
    sBad = 68
    sOk = 72
    nstamp = [0]
    def stamp():
        if stamps:
            A(f"  s_memrealtime s[{76+2*nstamp[0]}:{77+2*nstamp[0]}]")
            nstamp[0] += 1

    def ld_k(j):
        return [f"  buffer_load_dwordx4 {vr(K+8*j+4*h,4)}, {vr(vKo)}, s[32:35], s{sK} offen offset:{512*j+256*h} {kvpol}" for h in range(2)]
    def ld_tab(j, t, h, so):
        return f"  buffer_load_dwordx2 {vr(CS+8*j+4*t+2*h,2)}, {vr(vCo)}, s[{40+4*t}:{43+4*t}], s{so} offen offset:{256*j+128*h} {cspol}"
    def ld_cs(j):
        return [ld_tab(j, t, h, sC) for t in range(2) for h in range(2) if h == 0 or hashi(j, t)]
    def ld_v(jp):
        return [f"  buffer_load_dwordx4 {vr(V+8*j+4*h,4)}, {vr(vKo)}, s[36:39], s{sK} offen offset:{512*j+256*h} {kvpol}"
                for j in (2*jp, 2*jp+1) for h in range(2)]
    missing = [(j, t) for j in range(4) for t in range(2) if not hashi(j, t)]
    def advance():
        if missing:
            A(f"  s_mov_b32 s{sCp}, s{sC}")
        A(f"  s_add_u32 s{sOff}, s{sOff}, 0x20000")
        A(f"  s_and_b32 s{sOff}, s{sOff}, 0x1fffff")
        A(f"  s_add_u32 s{sK}, s{sOff}, s{sHb}")
        A(f"  s_lshr_b32 s{sC}, s{sOff}, 1")
    def read_sc():
        for j in range(4):
            A(f"  ds_read_b128 {vr(SC+4*j,4)}, {vr(vSc)} offset:{16*j}")
        A(f"  v_add_u32 {vr(vSc)}, {256*NW}, {vr(vSc)}")
    def clear_acc():
        return [f"  v_mov_b32 {vr(O+i)}, 0" for i in range(32)] + [
            f"  v_mov_b32 {vr(vM)}, {f32(-3.0e38)}", f"  v_mov_b32 {vr(vL)}, 0", f"  s_mov_b32 s{sT}, {NT}"]
    def st_record(o, ml):
        A(f"  buffer_store_dwordx4 {vr(o,4)}, {vr(vRa)}, s[56:59], s{sRec} offen {xpol}")
        A("  s_mov_b32 exec_lo, 1")
        A("  s_mov_b32 exec_hi, 1")
        A(f"  buffer_store_dwordx2 {vr(ml,2)}, {vr(vRb)}, s[56:59], s{sRec} offen offset:512 {xpol}")
        A("  s_mov_b64 exec, -1")

    A("  s_load_dwordx16 s[4:19], s[0:1], 0")
    A("  s_load_dwordx8 s[20:27], s[0:1], 64")
    A("  s_load_dwordx4 s[28:31], s[0:1], 96")
    if padto:
        A("  s_memrealtime s[74:75]")
    stamp()
    A(f"  s_cmpk_ge_u32 s2, {NWG}")
    A("  s_cbranch_scc1 L_end")
    A(f"  v_readfirstlane_b32 s{sW}, v0")
    A(f"  v_and_b32 {vr(vC)}, 15, v0")
    A(f"  v_bfe_u32 {vr(vG)}, v0, 4, 2")
    A(f"  v_lshlrev_b32 {vr(vKo)}, 4, {vr(vC)}")
    A(f"  v_lshl_add_u32 {vr(vKo)}, {vr(vG)}, 11, {vr(vKo)}")
    A(f"  s_lshr_b32 s{sW}, s{sW}, 6")
    A(f"  s_cmp_eq_u32 s{sW}, {NW}")
    A("  s_cbranch_scc1 L_helper")
    A("  s_andn2_b32 s54, s2, 15")
    A("  s_and_b32 s55, s2, 3")
    A("  s_lshl2_add_u32 s54, s55, s54")
    A(f"  s_add_u32 s54, s54, s{sW}")
    A(f"  s_lshl_b32 s{sOff}, s54, 13")
    A(f"  s_lshr_b32 s{sHead}, s2, 2")
    A(f"  s_lshl_b32 s{sHb}, s{sHead}, 21")
    A(f"  s_add_u32 s{sK}, s{sOff}, s{sHb}")
    A("  s_mov_b32 s34, 0x8000000")
    A("  s_mov_b32 s35, 0x20000")
    A("  s_waitcnt lgkmcnt(0)")
    A("  s_mov_b64 s[32:33], s[6:7]")
    for j in range(4):
        L.extend(ld_k(j))
    stamp()
    A(f"  v_lshrrev_b32 {vr(vY)}, 5, {vr(vT)}")
    A(f"  v_and_b32 {vr(vMn)}, 31, {vr(vT)}")
    A(f"  v_mul_u32_u24 {vr(vRb)}, {REC}, {vr(vY)}")
    A(f"  v_lshl_add_u32 {vr(vRa)}, {vr(vMn)}, 4, {vr(vRb)}")
    A("  s_mov_b64 s[56:57], s[30:31]")
    A(f"  s_mov_b32 s58, {NWG*8*REC}")
    A("  s_mov_b32 s59, 0x20000")
    A(f"  s_mul_i32 s{sRec}, s2, {8*REC}")
    A(f"  v_lshrrev_b32 {vr(vCo)}, 1, {vr(vKo)}")
    A(f"  s_lshr_b32 s{sC}, s{sOff}, 1")
    A("  s_mov_b64 s[40:41], s[22:23]")
    A("  s_mov_b32 s42, 0x100000")
    A("  s_mov_b32 s43, 0x20000")
    A("  s_mov_b64 s[44:45], s[24:25]")
    A("  s_mov_b32 s46, 0x100000")
    A("  s_mov_b32 s47, 0x20000")
    A(f"  s_lshr_b32 s54, s2, 4")
    A(f"  v_lshrrev_b32 {vr(vX)}, 4, {vr(vT)}")
    A(f"  v_add_u32 {vr(vX)}, s54, {vr(vX)}")
    A(f"  v_and_b32 {vr(vX)}, 15, {vr(vX)}")
    A(f"  v_lshlrev_b32 {vr(vX)}, 9, {vr(vX)}")
    A(f"  v_lshl_add_u32 {vr(vX)}, {vr(vC)}, 3, {vr(vX)}")
    A(f"  s_lshl_b32 s54, s{sHead}, 13")
    A("  s_lshl_b32 s55, s55, 7")
    A("  s_add_u32 s54, s54, s55")
    A(f"  v_add_u32 {vr(vX)}, s54, {vr(vX)}")
    A(f"  v_lshlrev_b32 {vr(vEs)}, 3, {vr(vY)}")
    A(f"  v_mul_u32_u24 {vr(vEr)}, {OROW}, {vr(vY)}")
    A(f"  v_lshl_add_u32 {vr(vEr)}, {vr(vMn)}, 4, {vr(vEr)}")
    A(f"  v_lshlrev_b32 {vr(vY)}, 8, {vr(vY)}")
    A(f"  v_lshl_add_u32 {vr(vY)}, {vr(vMn)}, 2, {vr(vY)}")
    A(f"  s_lshl_b32 s55, s{sHead}, 11")
    A("  s_add_u32 s4, s4, s55")
    A("  s_addc_u32 s5, s5, 0")
    SR, QR = AF, AF + 8
    for i, p in enumerate((8, 10, 14, 16)):
        A(f"  global_load_dwordx2 {vr(SR+2*i,2)}, {vr(vX)}, s[{p}:{p+1}] {smallpol}")
    for i, p in enumerate((4, 18, 20)):
        for h in range(2):
            A(f"  global_load_dword {vr(QR+2*i+h)}, {vr(vY)}, s[{p}:{p+1}] offset:{128*h} {smallpol}")
    setup = []
    B = setup.append
    B("  s_mov_b64 s[36:37], s[12:13]")
    B("  s_mov_b32 s38, 0x8000000")
    B("  s_mov_b32 s39, 0x20000")
    B(f"  s_mov_b32 s{sSelLo}, 0x05040100")
    B(f"  s_mov_b32 s{sSelHi}, 0x07060302")
    B(f"  s_mov_b32 s{sScale}, {f32(math.log2(math.e) / math.sqrt(128.0))}")
    for k in range(1, 4):
        B(f"  s_xor_b32 s54, s2, {k}")
        B(f"  s_mul_i32 s{sRec+k}, s54, {8*REC}")
    B(f"  s_mul_i32 s54, s{sW}, {WREG}")
    B(f"  v_mul_u32_u24 {vr(vLw)}, {4*ROW}, {vr(vG)}")
    B(f"  v_lshl_add_u32 {vr(vLw)}, {vr(vC)}, 4, {vr(vLw)}")
    B(f"  v_add_u32 {vr(vLw)}, s54, {vr(vLw)}")
    B(f"  v_mul_u32_u24 {vr(vLr)}, {ROW}, {vr(vC)}")
    B(f"  v_lshl_add_u32 {vr(vLr)}, {vr(vG)}, 6, {vr(vLr)}")
    B(f"  v_add_u32 {vr(vLr)}, s54, {vr(vLr)}")
    B(f"  v_and_b32 {vr(vMn)}, 7, {vr(vC)}")
    B(f"  v_lshl_add_u32 {vr(vEm)}, {vr(vMn)}, 3, s54")
    B(f"  v_mul_u32_u24 {vr(vEw)}, {OROW}, {vr(vMn)}")
    B(f"  v_lshl_add_u32 {vr(vEw)}, {vr(vG)}, 6, {vr(vEw)}")
    B(f"  v_lshrrev_b32 {vr(vX)}, 3, {vr(vC)}")
    B(f"  v_lshl_add_u32 {vr(vEw)}, {vr(vX)}, 8, {vr(vEw)}")
    B(f"  v_add_u32 {vr(vEw)}, s54, {vr(vEw)}")
    B(f"  v_mul_u32_u24 {vr(vMn)}, {ROW}, {vr(vMn)}")
    B(f"  v_lshl_add_u32 {vr(vMn)}, {vr(vG)}, 6, {vr(vMn)}")
    B(f"  s_lshl_b32 s54, s{sW}, 8")
    B(f"  s_add_u32 s54, s54, {SCB}")
    B(f"  v_lshl_add_u32 {vr(vSc)}, {vr(vG)}, 6, s54")
    B(f"  v_lshrrev_b32 {vr(vY)}, 5, {vr(vT)}")
    B(f"  v_mul_u32_u24 {vr(vY)}, {ROW}, {vr(vY)}")
    B(f"  v_and_b32 {vr(vX)}, 30, {vr(vT)}")
    B(f"  v_lshl_add_u32 {vr(vY)}, {vr(vX)}, 3, {vr(vY)}")
    B(f"  v_and_b32 {vr(vX)}, 1, {vr(vT)}")
    B(f"  v_lshl_add_u32 {vr(vY)}, {vr(vX)}, 2, {vr(vY)}")
    B(f"  v_lshlrev_b32 {vr(vX)}, 6, {vr(vT)}")
    setup += clear_acc()
    cs_all = [t for j in range(4) for t in ld_cs(j)]
    ncs = len(cs_all)
    per = -(-len(setup) // ncs)
    for i, t in enumerate(cs_all):
        A(t)
        L.extend(setup[per*i:per*i+per])
    stamp()
    v0l = ld_v(0)
    A(f"  s_waitcnt vmcnt({ncs+6})")
    stamp()
    for e in range(4):
        A(v0l[e])
        for i in range(4):
            src = SR + 2*i + e // 2
            if e % 2 == 0:
                A(f"  v_lshlrev_b32 {vr(G+4*e+i)}, 16, {vr(src)}")
            else:
                A(f"  v_and_b32 {vr(G+4*e+i)}, 0xffff0000, {vr(src)}")
        A(f"  v_mul_f32 {vr(G+4*e+1)}, -{vr(G+4*e)}, {vr(G+4*e+1)}")
        A(f"  v_mul_f32 {vr(G+4*e+3)}, -{vr(G+4*e+2)}, {vr(G+4*e+3)}")
        A(f"  ds_write_b128 {vr(vX)}, {vr(G+4*e,4)} offset:{SCB+16*e}")
    A(f"  s_waitcnt vmcnt({ncs+4})")
    for e, sel in enumerate((sSelLo, sSelHi)):
        A(f"  v_perm_b32 {vr(F+e)}, {vr(QR+1)}, {vr(QR)}, s{sel}")
        A(f"  v_perm_b32 {vr(T+e)}, {vr(QR+4)}, {vr(QR+2)}, s{sel}")
        A(f"  v_perm_b32 {vr(T+2+e)}, {vr(QR+3)}, {vr(QR+5)}, s{sel}")
    for e in range(2):
        A(f"  v_dot2_f32_bf16 {vr(T+e)}, {vr(F+e)}, {vr(T+e)}, 0 neg_hi:[0,1,0]")
    for e in range(2):
        A(f"  v_dot2_f32_bf16 {vr(T+2+e)}, {vr(F+e)}, {vr(T+2+e)}, 0")
    A("  s_nop 2")
    A(f"  v_cvt_pk_bf16_f32 {vr(F)}, {vr(T)}, {vr(T+1)}")
    A(f"  v_cvt_pk_bf16_f32 {vr(F+1)}, {vr(T+2)}, {vr(T+3)}")
    A(f"  ds_write_b32 {vr(vY)}, {vr(F)} offset:{QB}")
    A(f"  ds_write_b32 {vr(vY)}, {vr(F+1)} offset:{QB+8}")
    A("  s_waitcnt lgkmcnt(0)")
    A("  s_barrier")
    read_sc()
    for i in range(4):
        A(f"  ds_read_b128 {vr(Q+4*i,4)}, {vr(vMn)} offset:{QB+16*i}")
    L.extend(ld_v(1))
    advance()
    A("  s_waitcnt vmcnt(8)")
    if missing:
        A("  s_mov_b64 vcc, 0")
    stamp()

    grp = [2 + len(ld_cs(j)) for j in range(4)] + [4, 4]
    total = sum(grp)
    def wait(n):
        if n > 0:
            A(f"  s_cbranch_scc0 L_wait{n}")
            A(f"  s_waitcnt vmcnt({sum(grp[n+1:])})")
            A(f"L_wait{n}:")
        A(f"  s_waitcnt vmcnt({total - grp[n]})" + (" lgkmcnt(0)" if n == 0 else ""))
    def prefetch(n, loads):
        A(f"  s_cbranch_scc1 L_skip{n}")
        L.extend(loads)
        A(f"L_skip{n}:")
    def perm_hi(j, c, s):
        for r in range(4):
            sel = sSelLo if r % 2 == 0 else sSelHi
            A(f"  v_perm_b32 {vr(T+4+r)}, {vr(CS+8*j+2*c+r//2)}, {vr(CS+8*j+4+2*s+r//2)}, s{sel}")
    A("L_loop:")
    A(f"  s_cmp_eq_u32 s{sT}, 2")
    A(f"  s_cselect_b32 s{sOk+1}, {OKOFF}, 0")
    A(f"  s_cmp_eq_u32 s{sT}, 1")
    for j in range(4):
        kj, cj = K + 8*j, CS + 8*j
        wait(j)
        for i in range(8):
            A(f"  v_cvt_f32_i32 {vr(F+i)}, {vr(kj+i)}")
        for r in range(4):
            sel = sSelLo if r % 2 == 0 else sSelHi
            A(f"  v_perm_b32 {vr(T+r)}, {vr(cj+4+r//2)}, {vr(cj+r//2)}, s{sel}")
        if not (hashi(j, 0) and hashi(j, 1)):
            A(f"  s_cbranch_vccnz L_alt{j}")
        perm_hi(j, hashi(j, 0), hashi(j, 1))
        A(f"L_back{j}:")
        prefetch(j, ld_k(j) + ld_cs(j))
        for i in range(4):
            A(f"  v_pk_fma_f32 {vr(F+2*i,2)}, {vr(F+2*i,2)}, {vr(SC+4*j,2)}, {vr(SC+4*j,2)} op_sel:[0,0,1] op_sel_hi:[1,0,1]")
        for r in range(4):
            A(f"  v_cvt_pk_bf16_f32 {vr(F+r)}, {vr(F+r)}, {vr(F+4+r)}")
        for r in range(4):
            A(f"  v_dot2_f32_bf16 {vr(T+r)}, {vr(F+r)}, {vr(T+r)}, 0 neg_hi:[0,1,0]")
        for r in range(4):
            A(f"  v_dot2_f32_bf16 {vr(T+4+r)}, {vr(F+r)}, {vr(T+4+r)}, 0")
        for r in range(4):
            A(f"  v_cvt_pk_bf16_f32 {vr(W+r)}, {vr(T+2*r)}, {vr(T+2*r+1)}")
        A(f"  ds_write_b128 {vr(vLw)}, {vr(W,4)} offset:{ROW*j}")
    for i in range(4):
        A(f"  ds_read_b128 {vr(AF+4*i,4)}, {vr(vLr)} offset:{16*i}")
    def v_half(jp, mid=None):
        wait(4 + jp)
        for i in range(16):
            A(f"  v_cvt_f32_i32 {vr(G+i)}, {vr(V+16*jp+i)}")
        if mid:
            mid()
        prefetch(4 + jp, ld_v(jp) + ([f"  s_load_dword s{sOk}, s[28:29], s{sOk+1}"] if jp == 0 else []))
        for e in range(2):
            j = 2*jp + e
            for i in range(4):
                A(f"  v_pk_fma_f32 {vr(G+8*e+2*i,2)}, {vr(G+8*e+2*i,2)}, {vr(SC+4*j+2,2)}, {vr(SC+4*j+2,2)} op_sel:[0,0,1] op_sel_hi:[1,0,1]")
        for i in range(8):
            A(f"  v_cvt_pk_bf16_f32 {vr(VA+2*i+jp)}, {vr(G+i)}, {vr(G+8+i)}")
    def qk():
        A("  s_waitcnt lgkmcnt(0)")
        for i in range(4):
            c = "0" if i == 0 else vr(S, 4)
            A(f"  v_mfma_f32_16x16x32_bf16 {vr(S,4)}, {vr(AF+4*i,4)}, {vr(Q+4*i,4)}, {c}")
    v_half(0, qk)
    A(f"  v_max3_f32 {vr(vX)}, {vr(S)}, {vr(S+1)}, {vr(S+2)}")
    A(f"  v_max_f32 {vr(vX)}, {vr(vX)}, {vr(S+3)}")
    A(f"  v_mov_b32 {vr(vY)}, {vr(vX)}")
    A("  s_nop 1")
    A(f"  v_permlane32_swap_b32 {vr(vX)}, {vr(vY)}")
    A(f"  v_max_f32 {vr(vX)}, {vr(vX)}, {vr(vY)}")
    A(f"  v_mov_b32 {vr(vY)}, {vr(vX)}")
    A("  s_nop 1")
    A(f"  v_permlane16_swap_b32 {vr(vX)}, {vr(vY)}")
    A(f"  v_max_f32 {vr(vX)}, {vr(vX)}, {vr(vY)}")
    A(f"  v_mul_f32 {vr(vX)}, s{sScale}, {vr(vX)}")
    A(f"  v_max_f32 {vr(vMn)}, {vr(vM)}, {vr(vX)}")
    A(f"  v_sub_f32 {vr(vAl)}, {vr(vM)}, {vr(vMn)}")
    for r in range(4):
        A(f"  v_fma_f32 {vr(S+r)}, {vr(S+r)}, s{sScale}, -{vr(vMn)}")
    A(f"  v_exp_f32 {vr(vAl)}, {vr(vAl)}")
    for r in range(4):
        A(f"  v_exp_f32 {vr(S+r)}, {vr(S+r)}")
    A(f"  v_mov_b32 {vr(vM)}, {vr(vMn)}")
    A(f"  v_fma_f32 {vr(vL)}, {vr(vL)}, {vr(vAl)}, {vr(S)}")
    A(f"  v_add_f32 {vr(vX)}, {vr(S+1)}, {vr(S+2)}")
    A(f"  v_add_f32 {vr(vL)}, {vr(vL)}, {vr(S+3)}")
    A(f"  v_cvt_pk_bf16_f32 {vr(P)}, {vr(S)}, {vr(S+1)}")
    A(f"  v_cvt_pk_bf16_f32 {vr(P+1)}, {vr(S+2)}, {vr(S+3)}")
    A(f"  v_add_f32 {vr(vL)}, {vr(vL)}, {vr(vX)}")
    for i in range(16):
        A(f"  v_pk_mul_f32 {vr(O+2*i,2)}, {vr(O+2*i,2)}, {vr(vAl,2)} op_sel_hi:[1,0]")
    v_half(1)
    read_sc()
    for i in range(8):
        A(f"  v_mfma_f32_16x16x16_bf16 {vr(O+4*i,4)}, {vr(VA+2*i,2)}, {vr(P,2)}, {vr(O+4*i,4)}")
    advance()
    if stamps:
        A(f"  s_cmp_lg_u32 s{sT}, {NT}")
        A("  s_cbranch_scc1 L_nost")
        stamp()
        A("L_nost:")
    A(f"  s_sub_u32 s{sT}, s{sT}, 1")
    A(f"  s_cmp_lg_u32 s{sT}, 0")
    A("  s_cbranch_scc1 L_loop")

    stamp()
    PML, PO = K + 8, K + 16
    if missing:
        A(f"  s_or_b32 s54, s{sOk}, vcc_lo")
        A("  s_cbranch_scc0 L_restart")
    A(f"  v_mov_b32 {vr(vY)}, {vr(vL)}")
    A(f"  v_cmp_lt_u32 vcc, 7, {vr(vC)}")
    A("  s_mov_b64 s[36:37], s[26:27]")
    A(f"  v_permlane32_swap_b32 {vr(vL)}, {vr(vY)}")
    A(f"  v_add_f32 {vr(vL)}, {vr(vL)}, {vr(vY)}")
    A(f"  v_mov_b32 {vr(vY)}, {vr(vL)}")
    for rho in range(4):
        for r in range(4):
            A(f"  v_cndmask_b32 {vr(G+4*rho+r)}, {vr(O+4*r+rho)}, {vr(O+16+4*r+rho)}, vcc")
        A(f"  ds_write_b128 {vr(vEw)}, {vr(G+4*rho,4)} offset:{16*rho}")
        if rho == 0:
            A(f"  v_permlane16_swap_b32 {vr(vL)}, {vr(vY)}")
            A(f"  v_add_f32 {vr(vL)}, {vr(vL)}, {vr(vY)}")
            A(f"  ds_write_b64 {vr(vEm)}, {vr(vM,2)} offset:{MLOFF}")
    A(f"  s_mov_b32 s38, {64*8*128*2}")
    A(f"  s_lshl_b32 s71, s{sHead}, 11")
    A(f"  v_lshlrev_b32 {vr(vX)}, 3, {vr(vT)}")
    def ld_partners():
        for k in range(1, 4):
            A(f"  buffer_load_dwordx2 {vr(PML+2*(k-1),2)}, {vr(vRb)}, s[56:59], s{sRec+k} offen offset:512 {xpol}")
            A(f"  buffer_load_dwordx4 {vr(PO+4*(k-1),4)}, {vr(vRa)}, s[56:59], s{sRec+k} offen {xpol}")
    if specpos == 0:
        ld_partners()
    A("  s_waitcnt lgkmcnt(0)")
    A("  s_barrier")
    if specpos == 1:
        ld_partners()
    ML, OP = VA, AF
    for w in range(4):
        A(f"  ds_read_b64 {vr(ML+2*w,2)}, {vr(vEs)} offset:{MLOFF + w*WREG}")
    for w in range(4):
        A(f"  ds_read_b128 {vr(OP+4*w,4)}, {vr(vEr)} offset:{w*WREG}")
    if specpos == 2:
        ld_partners()
    A("  s_waitcnt lgkmcnt(4)")
    A(f"  v_max3_f32 {vr(vM)}, {vr(ML)}, {vr(ML+2)}, {vr(ML+4)}")
    A(f"  v_max_f32 {vr(vM)}, {vr(vM)}, {vr(ML+6)}")
    for w in range(4):
        A(f"  v_sub_f32 {vr(ML+2*w)}, {vr(ML+2*w)}, {vr(vM)}")
    for w in range(4):
        A(f"  v_exp_f32 {vr(ML+2*w)}, {vr(ML+2*w)}")
    A(f"  v_mul_f32 {vr(vL)}, {vr(ML)}, {vr(ML+1)}")
    for w in range(1, 4):
        A(f"  v_fma_f32 {vr(vL)}, {vr(ML+2*w)}, {vr(ML+2*w+1)}, {vr(vL)}")
    A("  s_waitcnt lgkmcnt(0)")
    for r in range(2):
        A(f"  v_pk_mul_f32 {vr(F+2*r,2)}, {vr(OP+2*r,2)}, {vr(ML,2)} op_sel_hi:[1,0]")
    for w in range(1, 4):
        for r in range(2):
            A(f"  v_pk_fma_f32 {vr(F+2*r,2)}, {vr(OP+4*w+2*r,2)}, {vr(ML+2*w,2)}, {vr(F+2*r,2)} op_sel_hi:[1,0,1]")
    for x in (vM, vL, F, F+1, F+2, F+3):
        A(f"  v_min_u32 {vr(x)}, -2, {vr(x)}")
    st_record(F, vM)
    stamp()
    def unfilled():
        regs = [PML+i for i in range(6)] + [PO+i for i in range(12)]
        for i in range(6):
            A(f"  v_max3_u32 {vr(T+i)}, {vr(regs[3*i])}, {vr(regs[3*i+1])}, {vr(regs[3*i+2])}")
        A(f"  v_max3_u32 {vr(T)}, {vr(T)}, {vr(T+1)}, {vr(T+2)}")
        A(f"  v_max3_u32 {vr(T+3)}, {vr(T+3)}, {vr(T+4)}, {vr(T+5)}")
        A(f"  v_max_u32 {vr(T)}, {vr(T)}, {vr(T+3)}")
        A(f"  v_cmp_eq_u32 vcc, -1, {vr(T)}")
    A(f"  s_cmp_eq_u32 s{sOk}, 0")
    A("  s_cbranch_scc1 L_slow")
    A("  s_waitcnt vmcnt(2)")
    unfilled()
    A("  s_mov_b32 s70, 1")
    A("  s_cbranch_vccz L_final")
    A("  s_waitcnt vmcnt(0)")
    A("L_reload:")
    ld_partners()
    A("  s_waitcnt vmcnt(0)")
    unfilled()
    A("  s_mov_b32 s70, 0")
    A("  s_cbranch_vccnz L_done")
    A("  s_mov_b32 s70, 2")
    A("L_final:")
    ms = [vM, PML, PML+2, PML+4]
    os_ = [F, PO, PO+4, PO+8]
    A(f"  v_max3_f32 {vr(vMn)}, {vr(ms[0])}, {vr(ms[1])}, {vr(ms[2])}")
    A(f"  v_max_f32 {vr(vMn)}, {vr(vMn)}, {vr(ms[3])}")
    for k in range(4):
        A(f"  v_sub_f32 {vr(T+2*k)}, {vr(ms[k])}, {vr(vMn)}")
    for k in range(4):
        A(f"  v_exp_f32 {vr(T+2*k)}, {vr(T+2*k)}")
    for k in range(4):
        A(f"  v_mul_f32 {vr(T+2*k+1)}, {vr(T+2*k)}, {vr(ms[k]+1)}")
    A(f"  v_add_f32 {vr(T+1)}, {vr(T+1)}, {vr(T+3)}")
    A(f"  v_add_f32 {vr(T+5)}, {vr(T+5)}, {vr(T+7)}")
    A(f"  v_add_f32 {vr(T+1)}, {vr(T+1)}, {vr(T+5)}")
    A(f"  v_rcp_f32 {vr(vAl)}, {vr(T+1)}")
    for k in range(4):
        for r in range(2):
            A(f"  v_pk_mul_f32 {vr(G+4*k+2*r,2)}, {vr(os_[k]+2*r,2)}, {vr(T+2*k,2)} op_sel_hi:[1,0]")
    for a, b in ((0, 1), (2, 3), (0, 2)):
        for r in range(2):
            A(f"  v_pk_add_f32 {vr(G+4*a+2*r,2)}, {vr(G+4*a+2*r,2)}, {vr(G+4*b+2*r,2)}")
    for r in range(2):
        A(f"  v_pk_mul_f32 {vr(G+2*r,2)}, {vr(G+2*r,2)}, {vr(vAl,2)} op_sel_hi:[1,0]")
    A(f"  v_cvt_pk_bf16_f32 {vr(W)}, {vr(G)}, {vr(G+1)}")
    A(f"  v_cvt_pk_bf16_f32 {vr(W+1)}, {vr(G+2)}, {vr(G+3)}")
    A(f"  buffer_store_dwordx2 {vr(W,2)}, {vr(vX)}, s[36:39], s71 offen {outpol}")
    A("L_done:")
    if stamps:
        A("  s_waitcnt vmcnt(0)")
        stamp()
        A("  s_waitcnt lgkmcnt(0)")
        A(f"  s_lshl_b32 s54, s2, 2")
        A(f"  s_add_u32 s54, s54, s{sW}")
        A(f"  s_lshl_b32 s54, s54, 6")
        A(f"  s_add_u32 s54, s54, {16<<20}")
        A(f"  s_mov_b32 s58, {32<<20}")
        for i in range(nstamp[0]):
            A(f"  v_mov_b32 {vr(G+i)}, s{76+2*i}")
        A(f"  v_mov_b32 {vr(G+15)}, s70")
        A("  s_getreg_b32 s70, hwreg(HW_REG_XCC_ID)")
        A(f"  v_mov_b32 {vr(G+14)}, s70")
        A("  s_mov_b64 exec, 1")
        for i in range(4):
            A(f"  buffer_store_dwordx4 {vr(G+4*i,4)}, off, s[56:59], s54 offset:{16*i}")
    if padto:
        A("L_pad:")
        A("  s_memrealtime s[76:77]")
        A("  s_waitcnt lgkmcnt(0)")
        A("  s_sub_u32 s76, s76, s74")
        A(f"  s_cmp_lt_u32 s76, {padto*100}")
        A("  s_cbranch_scc1 L_pad")
    A("L_end:")
    A("  s_endpgm")

    A("L_slow:")
    A(f"  v_mov_b32 {vr(vY)}, 0")
    A("  s_waitcnt vmcnt(0)")
    A(f"  global_load_dword {vr(K)}, {vr(vY)}, s[28:29] offset:{OKOFF} {xpol}")
    A("  s_waitcnt vmcnt(0)")
    A(f"  v_readfirstlane_b32 s54, {vr(K)}")
    A("  s_nop 3")
    A("  s_cmp_eq_u32 s54, 1")
    A("  s_cbranch_scc1 L_reload")
    A(f"  s_lshl2_add_u32 s54, s{sHead}, s{sW}")
    A("  s_and_b32 s55, s54, 7")
    A("  s_lshl_b32 s55, s55, 2")
    A("  s_lshr_b32 s54, s54, 3")
    A("  s_lshl_b32 s54, s54, 2")
    A(f"  v_mov_b32 {vr(vY)}, s54")
    A("  s_lshl_b32 s54, 1, s55")
    A(f"  v_mov_b32 {vr(K)}, s54")
    A("  s_mov_b64 exec, 1")
    A(f"  global_atomic_add {vr(K)}, {vr(vY)}, {vr(K)}, s[28:29] sc0 sc1")
    A("  s_waitcnt vmcnt(0)")
    A(f"  v_readfirstlane_b32 s54, {vr(K)}")
    A("  s_mov_b64 exec, -1")
    A("  s_nop 3")
    A("  s_lshr_b32 s54, s54, s55")
    A("  s_and_b32 s54, s54, 15")
    A("  s_cmp_eq_u32 s54, 3")
    A("  s_cbranch_scc1 L_reload")
    A("  s_mov_b32 s70, 0")
    A("  s_branch L_done")
    SN, CU, OLD = V, V + 4, V + 8
    A("L_helper:")
    A("  s_setprio 3")
    A(f"  v_and_b32 {vr(vX)}, 63, {vr(vT)}")
    A(f"  v_lshrrev_b32 {vr(vMn)}, {slotk-2}, {vr(vX)}")
    A(f"  v_mul_u32_u24 {vr(vMn)}, {slotstride}, {vr(vMn)}")
    A(f"  v_and_b32 {vr(vY)}, {(1 << (slotk-2)) - 1}, {vr(vX)}")
    A(f"  v_lshl_add_u32 {vr(vMn)}, {vr(vY)}, 4, {vr(vMn)}")
    A(f"  s_lshr_b32 s70, s2, {slotk}")
    A(f"  s_mul_i32 s70, s70, {slotstride}")
    A(f"  s_and_b32 s54, s2, {(1 << slotk) - 1}")
    A("  s_lshl2_add_u32 s70, s54, s70")
    A(f"  s_mov_b32 s71, {SLOTS}")
    A("  s_add_u32 s70, s70, s71")
    A(f"  s_mov_b32 s58, {WSUSE}")
    A("  s_mov_b32 s59, 0x20000")
    A("  s_cmp_lg_u32 s2, 0")
    A("  s_waitcnt lgkmcnt(0)")
    A("  s_mov_b64 s[56:57], s[30:31]")
    A("  s_cbranch_scc1 L_nosnap")
    A(f"  buffer_load_dwordx4 {vr(SN,4)}, {vr(vMn)}, s[56:59], s71 offen {xpol}")
    A("L_nosnap:")
    A(f"  buffer_load_dword {vr(OLD)}, off, s[56:59], s70 {xpol}")
    A(f"  v_lshrrev_b32 {vr(vY)}, 3, {vr(vX)}")
    A(f"  v_lshlrev_b32 {vr(vX)}, 4, {vr(vX)}")
    A(f"  v_lshl_add_u32 {vr(vY)}, {vr(vY)}, 7, {vr(vX)}")
    for i in range(4):
        A(f"  v_mov_b32 {vr(W+i)}, -1")
    A(f"  s_mul_i32 s{sRec}, s2, {8*REC}")
    A(f"  s_add_u32 s54, s{sRec}, 1024")
    A(f"  buffer_store_dwordx4 {vr(W,4)}, {vr(vX)}, s[56:59], s{sRec} offen {xpol}")
    for i in range(4):
        A(f"  buffer_store_dwordx4 {vr(W,4)}, {vr(vX)}, s[56:59], s54 offen offset:{1024*i} {xpol}")
    if missing:
        A("  s_andn2_b32 s54, s2, 15")
        A("  s_and_b32 s55, s2, 3")
        A("  s_lshl2_add_u32 s54, s55, s54")
        A("  s_bfe_u32 s55, s2, 0x20002")
        A("  s_add_u32 s54, s54, s55")
        A("  s_lshl_b32 s54, s54, 12")
        A(f"  v_add_u32 {vr(vY)}, s54, {vr(vY)}")
        for t in range(2):
            for u in range(2):
                for h in range(2):
                    A(f"  global_load_dwordx4 {vr(K+16*t+8*u+4*h,4)}, {vr(vY)}, s[{22+2*t}:{23+2*t}] offset:{2048*u+128*h} {cspol}")
    A("  s_barrier")
    A("  s_waitcnt vmcnt(0)")
    if missing:
        A(f"  s_mov_b64 s[{sBad}:{sBad+1}], 0")
        for i in range(4):
            for r in range(2):
                A(f"  v_cmp_ne_u64 vcc, {vr(K+8*i+2*r,2)}, {vr(K+8*i+4+2*r,2)}")
                A(f"  s_or_b64 s[{sBad}:{sBad+1}], s[{sBad}:{sBad+1}], vcc")
        A("  s_cbranch_scc1 L_end")
    if force:
        A(f"  s_cmp_eq_u32 s2, {force}")
        A("  s_cbranch_scc1 L_end")
    A(f"  v_add_u32 {vr(OLD)}, 1, {vr(OLD)}")
    A("  s_mov_b64 exec, 1")
    A(f"  buffer_store_dword {vr(OLD)}, off, s[56:59], s70 {xpol}")
    A("  s_mov_b64 exec, -1")
    A("  s_cmp_lg_u32 s2, 0")
    A("  s_cbranch_scc1 L_end")
    A(f"  s_mov_b32 s{sT}, {polls}")
    A("  s_waitcnt vmcnt(0)")
    A("L_watch:")
    A(f"  buffer_load_dwordx4 {vr(CU,4)}, {vr(vMn)}, s[56:59], s71 offen {xpol}")
    A(f"  s_mov_b64 s[{sBad}:{sBad+1}], 0")
    A("  s_waitcnt vmcnt(0)")
    for i in range(4):
        A(f"  v_cmp_eq_u32 vcc, {vr(SN+i)}, {vr(CU+i)}")
        A(f"  s_or_b64 s[{sBad}:{sBad+1}], s[{sBad}:{sBad+1}], vcc")
    A("  s_cbranch_scc0 L_goahead")
    A(f"  s_mov_b64 exec, s[{sBad}:{sBad+1}]")
    A(f"  s_sub_u32 s{sT}, s{sT}, 1")
    A(f"  s_cmp_lg_u32 s{sT}, 0")
    A("  s_cbranch_scc1 L_watch")
    A("  s_endpgm")
    A("L_goahead:")
    A("  s_mov_b64 exec, 1")
    A(f"  v_mov_b32 {vr(vX)}, 0")
    A(f"  v_mov_b32 {vr(vY)}, 1")
    A(f"  global_store_dword {vr(vX)}, {vr(vY)}, s[28:29] offset:{OKOFF} {xpol}")
    if stamps:
        A("  s_waitcnt vmcnt(0)")
        A("  s_memrealtime  s[78:79]")
        A("  s_waitcnt lgkmcnt(0)")
        A("  s_sub_u32 s78, s78, s76")
        A(f"  v_mov_b32 {vr(vY)}, s78")
        A(f"  global_store_dword {vr(vX)}, {vr(vY)}, s[28:29] offset:{OKOFF-4}")
        A(f"  v_mov_b32 {vr(vY)}, s{sT}")
        A(f"  global_store_dword {vr(vX)}, {vr(vY)}, s[28:29] offset:{OKOFF-8}")
    A("  s_endpgm")
    if missing:
        A("L_restart:")
        A(f"  s_sub_u32 s{sOff}, s{sOff}, 0x40000")
        advance()
        for j in range(4):
            L.extend(ld_k(j) + ld_cs(j))
        L.extend(ld_v(0) + ld_v(1))
        advance()
        A(f"  v_subrev_u32 {vr(vSc)}, {17*256*NW}, {vr(vSc)}")
        A("  s_waitcnt lgkmcnt(0)")
        read_sc()
        L.extend(clear_acc())
        A("  s_mov_b64 vcc, -1")
        A("  s_branch L_loop")
        for j in range(4):
            if hashi(j, 0) and hashi(j, 1):
                continue
            A(f"L_alt{j}:")
            for t in range(2):
                if not hashi(j, t):
                    A(ld_tab(j, t, 1, sCp))
            A("  s_waitcnt vmcnt(0)")
            perm_hi(j, 1, 1)
            A(f"  s_branch L_back{j}")
    A('.section .rodata,"a"')
    A(".p2align 6")
    A(f".amdhsa_kernel {kname}")
    A(f"  .amdhsa_next_free_vgpr {NV}")
    A(f"  .amdhsa_next_free_sgpr {96 if (stamps or padto) else 74}")
    A(f"  .amdhsa_accum_offset {(NV+3)//4*4}")
    A("  .amdhsa_group_segment_fixed_size 0")
    A("  .amdhsa_kernarg_size 112")
    A("  .amdhsa_user_sgpr_count 2")
    A("  .amdhsa_user_sgpr_kernarg_segment_ptr 1")
    A("  .amdhsa_system_sgpr_workgroup_id_x 1")
    A("  .amdhsa_float_denorm_mode_32 3")
    A(".end_amdhsa_kernel")
    return "\n".join(L) + "\n"

if __name__ == "__main__":
    out = sys.argv[1]
    kw = dict(a.split("=", 1) for a in sys.argv[2:])
    for k in list(kw):
        if kw[k] in ("True", "False"):
            kw[k] = kw[k] == "True"
    open(out, "w").write(gen(**kw))
```

```python
import sys, struct, math

NAME = "standalone__kv_cache_quant_pre_rope_vs_post_rope__sampling"
HEADER = open("cdna_kernels/%s.s.ref" % NAME).read().split("; Override launch")[0]

def f32(x):
    return "0x%08x" % struct.unpack("<I", struct.pack("<f", x))[0]

class Regs:
    def __init__(self, start):
        self.n = start
    def alloc(self, cnt, align=1):
        self.n = (self.n + align - 1) // align * align
        r = self.n
        self.n += cnt
        return r

def vr(a, n=1):
    return f"v{a}" if n == 1 else f"v[{a}:{a+n-1}]"

DOC = """\
;
; Split-key attention.  Workgroup wg: head = %s, split = %s; waves 0-3 take 16 steps of 16 keys each.
;   go-ahead a counter in d_debug picks the last of the four instead."""

def gen(kvpol="nt", cspol="", outpol="", smallpol="", stamps=False, padto=0, xpol="sc1", force=0, slotk=3, slotstride=4352,
        polls=24, specpos=2, trace=False, seq="01a2b3c|d", warm=2, codepf=0, den=0, wv=1, nfirst=2, n1=10, wmap=0, kfirst=1, win=0):
    padto, force, slotk, slotstride, polls = int(padto), int(force), int(slotk), int(slotstride), int(polls)
    specpos, warm, codepf, den, wv = int(specpos), int(warm), int(codepf), int(den), int(wv)
    nfirst, n1, wmap, kfirst = int(nfirst), int(n1), int(wmap), int(kfirst)
    win = int(win)
    NW = 4
    NWG = 256
    NT = 16
    ROW = 272
    WREG = 16 * ROW
    SCB = NW * WREG
    QB = SCB + 1024 * 16 + 1024
    LDS = QB + 8 * ROW
    OROW = 528
    MLOFF = 8 * OROW
    REC = 640
    SLOTS = NWG * 8 * REC
    WSUSE = SLOTS + (NWG >> slotk) * slotstride
    OKOFF = 252
    kname = NAME + "_kernel"
    L = []
    A = L.append
    A(HEADER.rstrip("\n"))
    A(f"; @launch grid=({NWG},1,1) block=({NW*64+64},1,1) lds={LDS}")
    A(DOC % (('(wg >> 3) * 2 + (wg & 1)', '(wg >> 1) & 3') if wmap else ('wg >> 2', 'wg & 3')))
    A('.amdgcn_target "amdgcn-amd-amdhsa--gfx950"')
    A(".text")
    A(f".globl {kname}")
    A(".p2align 8")
    A(f".type {kname},@function")
    A(f"{kname}:")

    R = Regs(1)
    vT = 0
    vC, vG = R.alloc(1), R.alloc(1)
    vKo, vCo, vLw, vLr, vSc = (R.alloc(1) for _ in range(5))
    vM = R.alloc(2, 2)
    vL = vM + 1
    vAl = R.alloc(2, 2)
    vMn = R.alloc(1)
    vX, vY, vRa = R.alloc(1), R.alloc(1), R.alloc(1)
    K = R.alloc(32, 4)
    CS = R.alloc(32, 4)
    V = R.alloc(32, 4)
    SC = R.alloc(16, 4)
    Q = R.alloc(16, 4)
    O = R.alloc(32, 4)
    F = R.alloc(8, 4)
    T = R.alloc(8, 4)
    W = R.alloc(4, 4)
    G = R.alloc(16, 4)
    VA = R.alloc(16, 4)
    AF = R.alloc(16, 4)
    S = R.alloc(4, 4)
    P = R.alloc(2, 2)
    vRb, vEw, vEm, vEr, vEs = (R.alloc(1) for _ in range(5))
    vTr = R.alloc(1) if trace else None
    NV = R.n
    assert NV <= 256
    sK, sC, sT, sW = 48, 49, 50, 3
    sSelLo, sSelHi, sScale, sHead, sHb, sOff = 51, 52, 53, 60, 61, 62
    sRec = 64
    sBad = 68
    sOk = 72
    nstamp = [0]
    def stamp():
        if stamps:
            A(f"  s_memrealtime s[{76+2*nstamp[0]}:{77+2*nstamp[0]}]")
            nstamp[0] += 1

    def ld_k(j):
        return [f"  buffer_load_dwordx4 {vr(K+8*j+4*h,4)}, {vr(vKo)}, s[32:35], s{sK} offen offset:{512*j+256*h} {kvpol}" for h in range(2)]
    def ld_tab(j, t, h, so):
        return f"  buffer_load_dwordx2 {vr(CS+8*j+4*t+2*h,2)}, {vr(vCo)}, s[{40+4*t}:{43+4*t}], s{so} offen offset:{256*j+128*h} {cspol}"
    def ld_cs(j):
        return [ld_tab(j, t, h, sC) for t in range(2) for h in range(2)]
    def ld_v(q):
        jp, h = q >> 1, q & 1
        return [f"  buffer_load_dwordx4 {vr(V+8*j+4*h,4)}, {vr(vKo)}, s[36:39], s{sK} offen offset:{512*j+256*h} {kvpol}"
                for j in (2*jp, 2*jp+1)]
    cons = [c for c in seq if c != "|"]
    def site(c):
        if c.isalpha():
            return ld_v(ord(c) - 97)
        k, t = ld_k(int(c)), ld_cs(int(c))
        return [k[0]] + t[:2] + [k[1]] + t[2:] if wv else k + t
    sites = [site(c) for c in cons]
    total = sum(len(x) for x in sites)
    first = [t for x in sites[:nfirst] for t in x]
    nfirst_v = any("s[36:39]" in t for t in first)
    rest = [t for x in sites[nfirst:] for t in x]
    if kfirst:
        first = [t for x in sites for t in x if "s[32:35]" in t]
        nfirst_v = False
        rest = [t for x in sites for t in x if "s[32:35]" not in t]
    def advance():
        A(f"  s_add_u32 s{sOff}, s{sOff}, 0x20000")
        A(f"  s_and_b32 s{sOff}, s{sOff}, 0x1fffff")
        A(f"  s_add_u32 s{sK}, s{sOff}, s{sHb}")
        A(f"  s_lshr_b32 s{sC}, s{sOff}, 1")
    def read_sc():
        for j in range(4):
            A(f"  ds_read_b128 {vr(SC+4*j,4)}, {vr(vSc)} offset:{16*j}")
        A(f"  v_add_u32 {vr(vSc)}, {256*NW}, {vr(vSc)}")
    def clear_acc():
        return [f"  v_mov_b32 {vr(O+i)}, 0" for i in range(32)] + [
            f"  v_mov_b32 {vr(vM)}, {f32(-3.0e38)}", f"  v_mov_b32 {vr(vL)}, 0", f"  s_mov_b32 s{sT}, {NT}"]
    def st_record(o, ml):
        A(f"  buffer_store_dwordx4 {vr(o,4)}, {vr(vRa)}, s[56:59], s{sRec} offen {xpol}")
        A("  s_mov_b32 exec_lo, 1")
        A("  s_mov_b32 exec_hi, 1")
        A(f"  buffer_store_dwordx2 {vr(ml,2)}, {vr(vRb)}, s[56:59], s{sRec} offen offset:512 {xpol}")
        A("  s_mov_b64 exec, -1")

    A("  s_load_dwordx16 s[4:19], s[0:1], 0")
    A("  s_load_dwordx8 s[20:27], s[0:1], 64")
    A("  s_load_dwordx4 s[28:31], s[0:1], 96")
    if padto:
        A("  s_memrealtime s[74:75]")
    stamp()
    A(f"  s_cmpk_ge_u32 s2, {NWG}")
    A("  s_cbranch_scc1 L_end")
    A(f"  v_readfirstlane_b32 s{sW}, v0")
    A(f"  v_and_b32 {vr(vC)}, 15, v0")
    A(f"  v_bfe_u32 {vr(vG)}, v0, 4, 2")
    A(f"  v_lshlrev_b32 {vr(vKo)}, 4, {vr(vC)}")
    A(f"  v_lshl_add_u32 {vr(vKo)}, {vr(vG)}, 11, {vr(vKo)}")
    A(f"  s_lshr_b32 s{sW}, s{sW}, 6")
    A(f"  s_cmp_eq_u32 s{sW}, {NW}")
    A("  s_cbranch_scc1 L_helper")
    A("  s_andn2_b32 s54, s2, 15")
    if wmap:
        A("  s_bfe_u32 s55, s2, 0x20001")
    else:
        A("  s_and_b32 s55, s2, 3")
    A("  s_lshl2_add_u32 s54, s55, s54")
    A(f"  s_add_u32 s54, s54, s{sW}")
    A(f"  s_lshl_b32 s{sOff}, s54, 13")
    if wmap:
        A(f"  s_lshr_b32 s{sHead}, s2, 3")
        A("  s_and_b32 s54, s2, 1")
        A(f"  s_lshl1_add_u32 s{sHead}, s{sHead}, s54")
    else:
        A(f"  s_lshr_b32 s{sHead}, s2, 2")
    A(f"  s_lshl_b32 s{sHb}, s{sHead}, 21")
    A(f"  s_add_u32 s{sK}, s{sOff}, s{sHb}")
    A(f"  v_lshrrev_b32 {vr(vCo)}, 1, {vr(vKo)}")
    A(f"  s_lshr_b32 s{sC}, s{sOff}, 1")
    A("  s_lshl_b32 s34, 1, 27")
    A("  s_mov_b32 s35, 0x20000")
    A("  s_lshl_b32 s42, 1, 20")
    A("  s_mov_b32 s43, s35")
    A("  s_mov_b64 s[46:47], s[42:43]")
    if nfirst_v:
        A("  s_mov_b64 s[38:39], s[34:35]")
    A("  s_waitcnt lgkmcnt(0)")
    A("  s_mov_b64 s[32:33], s[6:7]")
    L.extend(t for t in first if "s[32:35]" in t)
    if nfirst_v:
        A("  s_mov_b64 s[36:37], s[12:13]")
        L.extend(t for t in first if "s[36:39]" in t)
    A("  s_mov_b64 s[40:41], s[22:23]")
    A("  s_mov_b64 s[44:45], s[24:25]")
    L.extend(t for t in first if "dwordx2" in t)
    stamp()
    A(f"  v_lshrrev_b32 {vr(vY)}, 5, {vr(vT)}")
    A(f"  v_and_b32 {vr(vMn)}, 31, {vr(vT)}")
    A(f"  v_mul_u32_u24 {vr(vRb)}, {REC}, {vr(vY)}")
    A(f"  v_lshl_add_u32 {vr(vRa)}, {vr(vMn)}, 4, {vr(vRb)}")
    A("  s_mov_b64 s[56:57], s[30:31]")
    A(f"  s_mov_b32 s58, {NWG*8*REC}")
    A("  s_mov_b32 s59, 0x20000")
    A(f"  s_mul_i32 s{sRec}, s2, {8*REC}")
    if not nfirst_v:
        A("  s_mov_b64 s[36:37], s[12:13]")
        A("  s_mov_b64 s[38:39], s[34:35]")
    A(f"  s_lshr_b32 s54, s2, 4")
    A(f"  v_lshrrev_b32 {vr(vX)}, 4, {vr(vT)}")
    A(f"  v_add_u32 {vr(vX)}, s54, {vr(vX)}")
    A(f"  v_and_b32 {vr(vX)}, 15, {vr(vX)}")
    A(f"  v_lshlrev_b32 {vr(vX)}, 9, {vr(vX)}")
    A(f"  v_lshl_add_u32 {vr(vX)}, {vr(vC)}, 3, {vr(vX)}")
    A(f"  s_lshl_b32 s54, s{sHead}, 13")
    A("  s_lshl_b32 s55, s55, 7")
    A("  s_add_u32 s54, s54, s55")
    A(f"  v_add_u32 {vr(vX)}, s54, {vr(vX)}")
    A(f"  v_lshlrev_b32 {vr(vEs)}, 3, {vr(vY)}")
    A(f"  v_mul_u32_u24 {vr(vEr)}, {OROW}, {vr(vY)}")
    A(f"  v_lshl_add_u32 {vr(vEr)}, {vr(vMn)}, 4, {vr(vEr)}")
    A(f"  v_lshlrev_b32 {vr(vY)}, 8, {vr(vY)}")
    A(f"  v_lshl_add_u32 {vr(vY)}, {vr(vMn)}, 2, {vr(vY)}")
    A(f"  s_lshl_b32 s55, s{sHead}, 11")
    A("  s_add_u32 s4, s4, s55")
    A("  s_addc_u32 s5, s5, 0")
    SR, QR = AF, AF + 8
    for i, p in enumerate((8, 10, 14, 16)):
        A(f"  global_load_dwordx2 {vr(SR+2*i,2)}, {vr(vX)}, s[{p}:{p+1}] {smallpol}")
    for i, p in enumerate((4, 18, 20)):
        for h in range(2):
            A(f"  global_load_dword {vr(QR+2*i+h)}, {vr(vY)}, s[{p}:{p+1}] offset:{128*h} {smallpol}")
    setup = []
    B = setup.append
    B(f"  s_mov_b32 s{sSelLo}, 0x05040100")
    B(f"  s_mov_b32 s{sSelHi}, 0x07060302")
    B(f"  s_mov_b32 s{sScale}, {f32(math.log2(math.e) / math.sqrt(128.0) * (2.0**49 if den else 1.0))}")
    for k in range(1, 4):
        B(f"  s_xor_b32 s54, s2, {k << wmap}")
        B(f"  s_mul_i32 s{sRec+k}, s54, {8*REC}")
    B(f"  s_mul_i32 s54, s{sW}, {WREG}")
    B(f"  v_mul_u32_u24 {vr(vLw)}, {4*ROW}, {vr(vG)}")
    B(f"  v_lshl_add_u32 {vr(vLw)}, {vr(vC)}, 4, {vr(vLw)}")
    B(f"  v_add_u32 {vr(vLw)}, s54, {vr(vLw)}")
    B(f"  v_mul_u32_u24 {vr(vLr)}, {ROW}, {vr(vC)}")
    B(f"  v_lshl_add_u32 {vr(vLr)}, {vr(vG)}, 6, {vr(vLr)}")
    B(f"  v_add_u32 {vr(vLr)}, s54, {vr(vLr)}")
    B(f"  v_and_b32 {vr(vMn)}, 7, {vr(vC)}")
    B(f"  v_lshl_add_u32 {vr(vEm)}, {vr(vMn)}, 3, s54")
    B(f"  v_mul_u32_u24 {vr(vEw)}, {OROW}, {vr(vMn)}")
    B(f"  v_lshl_add_u32 {vr(vEw)}, {vr(vG)}, 6, {vr(vEw)}")
    B(f"  v_lshrrev_b32 {vr(vX)}, 3, {vr(vC)}")
    B(f"  v_lshl_add_u32 {vr(vEw)}, {vr(vX)}, 8, {vr(vEw)}")
    B(f"  v_add_u32 {vr(vEw)}, s54, {vr(vEw)}")
    B(f"  v_mul_u32_u24 {vr(vMn)}, {ROW}, {vr(vMn)}")
    B(f"  v_lshl_add_u32 {vr(vMn)}, {vr(vG)}, 6, {vr(vMn)}")
    B(f"  s_lshl_b32 s54, s{sW}, 8")
    B(f"  s_add_u32 s54, s54, {SCB}")
    B(f"  v_lshl_add_u32 {vr(vSc)}, {vr(vG)}, 6, s54")
    B(f"  v_lshrrev_b32 {vr(vY)}, 5, {vr(vT)}")
    B(f"  v_mul_u32_u24 {vr(vY)}, {ROW}, {vr(vY)}")
    B(f"  v_and_b32 {vr(vX)}, 30, {vr(vT)}")
    B(f"  v_lshl_add_u32 {vr(vY)}, {vr(vX)}, 3, {vr(vY)}")
    B(f"  v_and_b32 {vr(vX)}, 1, {vr(vT)}")
    B(f"  v_lshl_add_u32 {vr(vY)}, {vr(vX)}, 2, {vr(vY)}")
    B(f"  v_lshlrev_b32 {vr(vX)}, 6, {vr(vT)}")
    setup += clear_acc()
    cs_all, v0l, v1l = rest[:n1], rest[n1:n1+8], rest[n1+8:]
    ncs = len(cs_all)
    per = -(-len(setup) // ncs)
    for i, t in enumerate(cs_all):
        A(t)
        L.extend(setup[per*i:per*i+per])
    stamp()
    nper = len(v0l) // 4
    A(f"  s_waitcnt vmcnt({ncs+6})")
    stamp()
    for e in range(4):
        L.extend(v0l[nper*e:nper*e+nper])
        for i in range(4):
            src = SR + 2*i + e // 2
            if e % 2 == 0:
                A(f"  v_lshlrev_b32 {vr(G+4*e+i)}, 16, {vr(src)}")
            else:
                A(f"  v_and_b32 {vr(G+4*e+i)}, 0xffff0000, {vr(src)}")
        A(f"  v_mul_f32 {vr(G+4*e+1)}, -{vr(G+4*e)}, {vr(G+4*e+1)}")
        A(f"  v_mul_f32 {vr(G+4*e+3)}, -{vr(G+4*e+2)}, {vr(G+4*e+3)}")
        if den:
            for i in range(4):
                A(f"  v_mul_f32 {vr(G+4*e+i)}, {f32(2.0**-49 if i % 2 else 2.0**100)}, {vr(G+4*e+i)}")
        A(f"  ds_write_b128 {vr(vX)}, {vr(G+4*e,4)} offset:{SCB+16*e}")
    A(f"  s_waitcnt vmcnt({ncs+len(v0l)})")
    for e, sel in enumerate((sSelLo, sSelHi)):
        A(f"  v_perm_b32 {vr(F+e)}, {vr(QR+1)}, {vr(QR)}, s{sel}")
        A(f"  v_perm_b32 {vr(T+e)}, {vr(QR+4)}, {vr(QR+2)}, s{sel}")
        A(f"  v_perm_b32 {vr(T+2+e)}, {vr(QR+3)}, {vr(QR+5)}, s{sel}")
    for e in range(2):
        A(f"  v_dot2_f32_bf16 {vr(T+e)}, {vr(F+e)}, {vr(T+e)}, 0 neg_hi:[0,1,0]")
    for e in range(2):
        A(f"  v_dot2_f32_bf16 {vr(T+2+e)}, {vr(F+e)}, {vr(T+2+e)}, 0")
    A("  s_nop 2")
    A(f"  v_cvt_pk_bf16_f32 {vr(F)}, {vr(T)}, {vr(T+1)}")
    A(f"  v_cvt_pk_bf16_f32 {vr(F+1)}, {vr(T+2)}, {vr(T+3)}")
    A(f"  ds_write_b32 {vr(vY)}, {vr(F)} offset:{QB}")
    A(f"  ds_write_b32 {vr(vY)}, {vr(F+1)} offset:{QB+8}")
    A("  s_waitcnt lgkmcnt(0)")
    A("  s_barrier")
    read_sc()
    for i in range(4):
        A(f"  ds_read_b128 {vr(Q+4*i,4)}, {vr(vMn)} offset:{QB+16*i}")
    L.extend(v1l)
    advance()
    lastk = max(n for n, c in enumerate(cons) if c.isdigit())
    if kfirst:
        A(f"  s_waitcnt vmcnt({sum(len([t for t in x if 's[32:35]' not in t]) for x in sites[lastk:])})")
    stamp()

    def tile(last):
        def wait(n):
            after = sum(len(x) for x in sites[n+1:]) if last else total - len(sites[n])
            A(f"  s_waitcnt vmcnt({after})" + (" lgkmcnt(0)" if n == 0 else ""))
        def prefetch(n):
            if not last:
                for t in sites[n]:
                    if win and "dwordx4" in t:
                        A(f"  s_waitcnt vmcnt({win})")
                    A(t)
        def dequant(dst, src, cnt, sc):
            for i in range(cnt // 2):
                A(f"  v_pk_fma_f32 {vr(dst+2*i,2)}, {vr(src+2*i,2)}, {vr(sc,2)}, {vr(sc,2)} op_sel:[0,0,1] op_sel_hi:[1,0,1]")
        def k_row(n, j):
            kj, cj = K + 8*j, CS + 8*j
            if trace and n == 0:
                A("  s_memrealtime  s[94:95]")
            wait(n)
            if trace and n == 0:
                A(f"  s_mov_b32 m0, s{sT}")
                A(f"  v_writelane_b32 {vr(vTr)}, s94, m0")
            if last and n == 0:
                A(f"  s_load_dword s{sOk}, s[28:29], {OKOFF}")
                A("L_warm:")
            if den:
                dequant(F, kj, 8, SC+4*j)
            else:
                for i in range(8):
                    A(f"  v_cvt_f32_i32 {vr(F+i)}, {vr(kj+i)}")
            for r in range(4):
                sel = sSelLo if r % 2 == 0 else sSelHi
                A(f"  v_perm_b32 {vr(T+r)}, {vr(cj+4+r//2)}, {vr(cj+r//2)}, s{sel}")
            for r in range(4):
                sel = sSelLo if r % 2 == 0 else sSelHi
                A(f"  v_perm_b32 {vr(T+4+r)}, {vr(cj+2+r//2)}, {vr(cj+6+r//2)}, s{sel}")
            prefetch(n)
            if not den:
                dequant(F, F, 8, SC+4*j)
            for r in range(4):
                A(f"  v_cvt_pk_bf16_f32 {vr(F+r)}, {vr(F+r)}, {vr(F+4+r)}")
            for r in range(4):
                A(f"  v_dot2_f32_bf16 {vr(T+r)}, {vr(F+r)}, {vr(T+r)}, 0 neg_hi:[0,1,0]")
            for r in range(4):
                A(f"  v_dot2_f32_bf16 {vr(T+4+r)}, {vr(F+r)}, {vr(T+4+r)}, 0")
            for r in range(4):
                A(f"  v_cvt_pk_bf16_f32 {vr(W+r)}, {vr(T+2*r)}, {vr(T+2*r+1)}")
            A(f"  ds_write_b128 {vr(vLw)}, {vr(W,4)} offset:{ROW*j}")
        def v_first(n, q):
            jp, h = q >> 1, q & 1
            wait(n)
            for e in range(2):
                src = V + 8*(2*jp+e) + 4*h
                if den:
                    dequant(G+4*e, src, 4, SC+4*(2*jp+e)+2)
                else:
                    for i in range(4):
                        A(f"  v_cvt_f32_i32 {vr(G+4*e+i)}, {vr(src+i)}")
        def v_second(q):
            jp, h = q >> 1, q & 1
            if not den:
                for e in range(2):
                    dequant(G+4*e, G+4*e, 4, SC+4*(2*jp+e)+2)
            for r in range(4):
                A(f"  v_cvt_pk_bf16_f32 {vr(VA+2*(4*h+r)+jp)}, {vr(G+r)}, {vr(G+4+r)}")
        def consume(n, c, mid=None):
            if c.isdigit():
                k_row(n, int(c))
                if n == lastk:
                    for i in range(4):
                        A(f"  ds_read_b128 {vr(AF+4*i,4)}, {vr(vLr)} offset:{16*i}")
            else:
                v_first(n, ord(c) - 97)
                prefetch(n)
                if mid:
                    mid()
                v_second(ord(c) - 97)
        def qk():
            A("  s_waitcnt lgkmcnt(0)")
            for i in range(4):
                c = "0" if i == 0 else vr(S, 4)
                A(f"  v_mfma_f32_16x16x32_bf16 {vr(S,4)}, {vr(AF+4*i,4)}, {vr(Q+4*i,4)}, {c}")
        nbar = seq.index("|")
        assert cons[nbar-1].isalpha() and nbar - 1 > lastk
        for n in range(nbar):
            consume(n, cons[n], qk if n == nbar - 1 else None)
        if den:
            A("  s_nop 3")
        A(f"  v_max3_f32 {vr(vX)}, {vr(S)}, {vr(S+1)}, {vr(S+2)}")
        A(f"  v_max_f32 {vr(vX)}, {vr(vX)}, {vr(S+3)}")
        A(f"  v_mov_b32 {vr(vY)}, {vr(vX)}")
        A("  s_nop 1")
        A(f"  v_permlane32_swap_b32 {vr(vX)}, {vr(vY)}")
        A(f"  v_max_f32 {vr(vX)}, {vr(vX)}, {vr(vY)}")
        A(f"  v_mov_b32 {vr(vY)}, {vr(vX)}")
        A("  s_nop 1")
        A(f"  v_permlane16_swap_b32 {vr(vX)}, {vr(vY)}")
        A(f"  v_max_f32 {vr(vX)}, {vr(vX)}, {vr(vY)}")
        A(f"  v_mul_f32 {vr(vX)}, s{sScale}, {vr(vX)}")
        A(f"  v_max_f32 {vr(vMn)}, {vr(vM)}, {vr(vX)}")
        A(f"  v_sub_f32 {vr(vAl)}, {vr(vM)}, {vr(vMn)}")
        for r in range(4):
            A(f"  v_fma_f32 {vr(S+r)}, {vr(S+r)}, s{sScale}, -{vr(vMn)}")
        A(f"  v_exp_f32 {vr(vAl)}, {vr(vAl)}")
        for r in range(4):
            A(f"  v_exp_f32 {vr(S+r)}, {vr(S+r)}")
        A(f"  v_mov_b32 {vr(vM)}, {vr(vMn)}")
        A(f"  v_fma_f32 {vr(vL)}, {vr(vL)}, {vr(vAl)}, {vr(S)}")
        A(f"  v_add_f32 {vr(vX)}, {vr(S+1)}, {vr(S+2)}")
        A(f"  v_add_f32 {vr(vL)}, {vr(vL)}, {vr(S+3)}")
        A(f"  v_cvt_pk_bf16_f32 {vr(P)}, {vr(S)}, {vr(S+1)}")
        A(f"  v_cvt_pk_bf16_f32 {vr(P+1)}, {vr(S+2)}, {vr(S+3)}")
        A(f"  v_add_f32 {vr(vL)}, {vr(vL)}, {vr(vX)}")
        for i in range(16):
            A(f"  v_pk_mul_f32 {vr(O+2*i,2)}, {vr(O+2*i,2)}, {vr(vAl,2)} op_sel_hi:[1,0]")
        if last:
            A(f"  v_mov_b32 {vr(vY)}, {vr(vL)}")
            A(f"  v_cmp_lt_u32 vcc, 7, {vr(vC)}")
            A("  s_mov_b64 s[36:37], s[26:27]")
            A(f"  v_permlane32_swap_b32 {vr(vL)}, {vr(vY)}")
            A(f"  v_add_f32 {vr(vL)}, {vr(vL)}, {vr(vY)}")
            A(f"  v_mov_b32 {vr(vY)}, {vr(vL)}")
            A(f"  s_mov_b32 s38, {64*8*128*2}")
            A(f"  s_lshl_b32 s71, s{sHead}, 11")
            A(f"  v_permlane16_swap_b32 {vr(vL)}, {vr(vY)}")
            A(f"  v_add_f32 {vr(vL)}, {vr(vL)}, {vr(vY)}")
            A(f"  v_lshlrev_b32 {vr(vX)}, 3, {vr(vT)}")
            A(f"  ds_write_b64 {vr(vEm)}, {vr(vM,2)} offset:{MLOFF}")
        for n in range(nbar, len(cons)):
            consume(n, cons[n])
        if not last:
            read_sc()
        else:
            A("  s_nop 1")
        for i in range(8):
            A(f"  v_mfma_f32_16x16x16_bf16 {vr(O+4*i,4)}, {vr(VA+2*i,2)}, {vr(P,2)}, {vr(O+4*i,4)}")
    A("L_loop:")
    tile(False)
    advance()
    if stamps:
        A(f"  s_cmp_lg_u32 s{sT}, {NT}")
        A("  s_cbranch_scc1 L_nost")
        stamp()
        A("L_nost:")
    A(f"  s_sub_u32 s{sT}, s{sT}, 1")
    A(f"  s_cmp_lg_u32 s{sT}, 1")
    A("  s_cbranch_scc1 L_loop")
    tile(True)

    stamp()
    PML, PO = K + 8, K + 16
    A("  s_nop 4")
    for rho in range(4):
        for r in range(4):
            A(f"  v_cndmask_b32 {vr(G+4*rho+r)}, {vr(O+4*r+rho)}, {vr(O+16+4*r+rho)}, vcc")
        A(f"  ds_write_b128 {vr(vEw)}, {vr(G+4*rho,4)} offset:{16*rho}")
    def ld_partners():
        for k in range(1, 4):
            A(f"  buffer_load_dwordx2 {vr(PML+2*(k-1),2)}, {vr(vRb)}, s[56:59], s{sRec+k} offen offset:512 {xpol}")
            A(f"  buffer_load_dwordx4 {vr(PO+4*(k-1),4)}, {vr(vRa)}, s[56:59], s{sRec+k} offen {xpol}")
    if warm:
        A("  s_cbranch_execz " + ("L_hop1" if warm == 2 else "L_end"))
    if specpos == 0:
        ld_partners()
    A("  s_waitcnt lgkmcnt(0)")
    A("  s_barrier")
    if specpos == 1:
        ld_partners()
    ML, OP = VA, AF
    for w in range(4):
        A(f"  ds_read_b64 {vr(ML+2*w,2)}, {vr(vEs)} offset:{MLOFF + w*WREG}")
    for w in range(4):
        A(f"  ds_read_b128 {vr(OP+4*w,4)}, {vr(vEr)} offset:{w*WREG}")
    if specpos == 2:
        ld_partners()
    A("L_hop1:")
    A("  s_waitcnt lgkmcnt(4)")
    A(f"  v_max3_f32 {vr(vM)}, {vr(ML)}, {vr(ML+2)}, {vr(ML+4)}")
    A(f"  v_max_f32 {vr(vM)}, {vr(vM)}, {vr(ML+6)}")
    for w in range(4):
        A(f"  v_sub_f32 {vr(ML+2*w)}, {vr(ML+2*w)}, {vr(vM)}")
    for w in range(4):
        A(f"  v_exp_f32 {vr(ML+2*w)}, {vr(ML+2*w)}")
    A(f"  v_mul_f32 {vr(vL)}, {vr(ML)}, {vr(ML+1)}")
    for w in range(1, 4):
        A(f"  v_fma_f32 {vr(vL)}, {vr(ML+2*w)}, {vr(ML+2*w+1)}, {vr(vL)}")
    A("  s_waitcnt lgkmcnt(0)")
    for r in range(2):
        A(f"  v_pk_mul_f32 {vr(F+2*r,2)}, {vr(OP+2*r,2)}, {vr(ML,2)} op_sel_hi:[1,0]")
    for w in range(1, 4):
        for r in range(2):
            A(f"  v_pk_fma_f32 {vr(F+2*r,2)}, {vr(OP+4*w+2*r,2)}, {vr(ML+2*w,2)}, {vr(F+2*r,2)} op_sel_hi:[1,0,1]")
    for x in (vM, vL, F, F+1, F+2, F+3):
        A(f"  v_min_u32 {vr(x)}, -2, {vr(x)}")
    if warm == 2:
        A("  s_cbranch_execz L_hop2")
    st_record(F, vM)
    stamp()
    def unfilled():
        regs = [PML+i for i in range(6)] + [PO+i for i in range(12)]
        for i in range(6):
            A(f"  v_max3_u32 {vr(T+i)}, {vr(regs[3*i])}, {vr(regs[3*i+1])}, {vr(regs[3*i+2])}")
        A(f"  v_max3_u32 {vr(T)}, {vr(T)}, {vr(T+1)}, {vr(T+2)}")
        A(f"  v_max3_u32 {vr(T+3)}, {vr(T+3)}, {vr(T+4)}, {vr(T+5)}")
        A(f"  v_max_u32 {vr(T)}, {vr(T)}, {vr(T+3)}")
        A(f"  v_cmp_eq_u32 vcc, -1, {vr(T)}")
    A(f"  s_cmp_eq_u32 s{sOk}, 0")
    A("  s_cbranch_scc1 L_slow")
    A("  s_waitcnt vmcnt(2)")
    A("L_hop2:")
    unfilled()
    A("  s_mov_b32 s70, 1")
    A("  s_cbranch_vccz L_final")
    if warm == 2:
        A("  s_cbranch_execz L_final")
    A("  s_waitcnt vmcnt(0)")
    A("L_reload:")
    ld_partners()
    A("  s_waitcnt vmcnt(0)")
    unfilled()
    A("  s_mov_b32 s70, 0")
    A("  s_cbranch_vccnz L_done")
    A("  s_mov_b32 s70, 2")
    A("L_final:")
    ms = [vM, PML, PML+2, PML+4]
    os_ = [F, PO, PO+4, PO+8]
    A(f"  v_max3_f32 {vr(vMn)}, {vr(ms[0])}, {vr(ms[1])}, {vr(ms[2])}")
    A(f"  v_max_f32 {vr(vMn)}, {vr(vMn)}, {vr(ms[3])}")
    for k in range(4):
        A(f"  v_sub_f32 {vr(T+2*k)}, {vr(ms[k])}, {vr(vMn)}")
    for k in range(4):
        A(f"  v_exp_f32 {vr(T+2*k)}, {vr(T+2*k)}")
    for k in range(4):
        A(f"  v_mul_f32 {vr(T+2*k+1)}, {vr(T+2*k)}, {vr(ms[k]+1)}")
    A(f"  v_add_f32 {vr(T+1)}, {vr(T+1)}, {vr(T+3)}")
    A(f"  v_add_f32 {vr(T+5)}, {vr(T+5)}, {vr(T+7)}")
    A(f"  v_add_f32 {vr(T+1)}, {vr(T+1)}, {vr(T+5)}")
    if den:
        A(f"  v_mul_f32 {vr(T+1)}, {f32(2.0**-49)}, {vr(T+1)}")
    A(f"  v_rcp_f32 {vr(vAl)}, {vr(T+1)}")
    for k in range(4):
        for r in range(2):
            A(f"  v_pk_mul_f32 {vr(G+4*k+2*r,2)}, {vr(os_[k]+2*r,2)}, {vr(T+2*k,2)} op_sel_hi:[1,0]")
    for a, b in ((0, 1), (2, 3), (0, 2)):
        for r in range(2):
            A(f"  v_pk_add_f32 {vr(G+4*a+2*r,2)}, {vr(G+4*a+2*r,2)}, {vr(G+4*b+2*r,2)}")
    for r in range(2):
        A(f"  v_pk_mul_f32 {vr(G+2*r,2)}, {vr(G+2*r,2)}, {vr(vAl,2)} op_sel_hi:[1,0]")
    A(f"  v_cvt_pk_bf16_f32 {vr(W)}, {vr(G)}, {vr(G+1)}")
    A(f"  v_cvt_pk_bf16_f32 {vr(W+1)}, {vr(G+2)}, {vr(G+3)}")
    if warm == 2:
        A("  s_cbranch_execz L_end")
    A(f"  buffer_store_dwordx2 {vr(W,2)}, {vr(vX)}, s[36:39], s71 offen {outpol}")
    A("L_done:")
    if stamps:
        A("  s_waitcnt vmcnt(0)")
        stamp()
        A("  s_waitcnt lgkmcnt(0)")
        A(f"  s_lshl_b32 s54, s2, 2")
        A(f"  s_add_u32 s54, s54, s{sW}")
        A(f"  s_lshl_b32 s54, s54, 6")
        A(f"  s_add_u32 s54, s54, {16<<20}")
        A(f"  s_mov_b32 s58, {32<<20}")
        for i in range(nstamp[0]):
            A(f"  v_mov_b32 {vr(G+i)}, s{76+2*i}")
        A(f"  v_mov_b32 {vr(G+15)}, s70")
        A("  s_getreg_b32 s70, hwreg(HW_REG_XCC_ID)")
        A(f"  v_mov_b32 {vr(G+14)}, s70")
        A("  s_getreg_b32 s70, hwreg(HW_REG_HW_ID)")
        A(f"  v_mov_b32 {vr(G+13)}, s70")
        if trace:
            A(f"  s_lshl_b32 s55, s54, 1")
            A(f"  s_sub_u32 s55, s55, {8<<20}")
            A(f"  v_and_b32 {vr(vX)}, 63, {vr(vT)}")
            A(f"  v_lshlrev_b32 {vr(vX)}, 2, {vr(vX)}")
            A("  s_mov_b32 exec_hi, 0")
            A(f"  buffer_store_dword {vr(vTr)}, {vr(vX)}, s[56:59], s55 offen")
        A("  s_mov_b64 exec, 1")
        for i in range(4):
            A(f"  buffer_store_dwordx4 {vr(G+4*i,4)}, off, s[56:59], s54 offset:{16*i}")
    if padto:
        A("L_pad:")
        A("  s_memrealtime s[76:77]")
        A("  s_waitcnt lgkmcnt(0)")
        A("  s_sub_u32 s76, s76, s74")
        A(f"  s_cmp_lt_u32 s76, {padto*100}")
        A("  s_cbranch_scc1 L_pad")
    A("L_end:")
    A("  s_endpgm")

    A("L_slow:")
    A(f"  v_mov_b32 {vr(vY)}, 0")
    A("  s_waitcnt vmcnt(0)")
    A(f"  global_load_dword {vr(K)}, {vr(vY)}, s[28:29] offset:{OKOFF} {xpol}")
    A("  s_waitcnt vmcnt(0)")
    A(f"  v_readfirstlane_b32 s54, {vr(K)}")
    A("  s_nop 3")
    A("  s_cmp_eq_u32 s54, 1")
    A("  s_cbranch_scc1 L_reload")
    A(f"  s_lshl2_add_u32 s54, s{sHead}, s{sW}")
    A("  s_and_b32 s55, s54, 7")
    A("  s_lshl_b32 s55, s55, 2")
    A("  s_lshr_b32 s54, s54, 3")
    A("  s_lshl_b32 s54, s54, 2")
    A(f"  v_mov_b32 {vr(vY)}, s54")
    A("  s_lshl_b32 s54, 1, s55")
    A(f"  v_mov_b32 {vr(K)}, s54")
    A("  s_mov_b64 exec, 1")
    A(f"  global_atomic_add {vr(K)}, {vr(vY)}, {vr(K)}, s[28:29] sc0 sc1")
    A("  s_waitcnt vmcnt(0)")
    A(f"  v_readfirstlane_b32 s54, {vr(K)}")
    A("  s_mov_b64 exec, -1")
    A("  s_nop 3")
    A("  s_lshr_b32 s54, s54, s55")
    A("  s_and_b32 s54, s54, 15")
    A("  s_cmp_eq_u32 s54, 3")
    A("  s_cbranch_scc1 L_reload")
    A("  s_mov_b32 s70, 0")
    A("  s_branch L_done")
    SN, CU, OLD = V, V + 4, V + 8
    A("L_helper:")
    A("  s_setprio 3")
    A(f"  v_and_b32 {vr(vX)}, 63, {vr(vT)}")
    A(f"  v_lshrrev_b32 {vr(vMn)}, {slotk-2}, {vr(vX)}")
    A(f"  v_mul_u32_u24 {vr(vMn)}, {slotstride}, {vr(vMn)}")
    A(f"  v_and_b32 {vr(vY)}, {(1 << (slotk-2)) - 1}, {vr(vX)}")
    A(f"  v_lshl_add_u32 {vr(vMn)}, {vr(vY)}, 4, {vr(vMn)}")
    A(f"  s_lshr_b32 s70, s2, {slotk}")
    A(f"  s_mul_i32 s70, s70, {slotstride}")
    A(f"  s_and_b32 s54, s2, {(1 << slotk) - 1}")
    A("  s_lshl2_add_u32 s70, s54, s70")
    A(f"  s_mov_b32 s71, {SLOTS}")
    A("  s_add_u32 s70, s70, s71")
    A(f"  s_mov_b32 s58, {WSUSE}")
    A("  s_mov_b32 s59, 0x20000")
    A("  s_cmp_lg_u32 s2, 0")
    A("  s_waitcnt lgkmcnt(0)")
    A("  s_mov_b64 s[56:57], s[30:31]")
    A("  s_cbranch_scc1 L_nosnap")
    A(f"  buffer_load_dwordx4 {vr(SN,4)}, {vr(vMn)}, s[56:59], s71 offen {xpol}")
    A("L_nosnap:")
    if codepf:
        A(f"  s_cmp_ge_u32 s2, {codepf}")
        A("  s_cbranch_scc1 L_nopf")
        A("  s_getpc_b64 s[54:55]")
        A("L_pc:")
        A(f"  s_sub_u32 s54, s54, L_pc-{kname}")
        A("  s_subb_u32 s55, s55, 0")
        A(f"  v_lshlrev_b32 {vr(vY)}, 7, {vr(vX)}")
        A(f"  v_cmp_gt_u32 vcc, L_pc-{kname}, {vr(vY)}")
        A("  s_and_saveexec_b64 s[68:69], vcc")
        A(f"  global_load_dword {vr(CU)}, {vr(vY)}, s[54:55]")
        A("  s_mov_b64 exec, -1")
        A("L_nopf:")
    A(f"  buffer_load_dword {vr(OLD)}, off, s[56:59], s70 {xpol}")
    A(f"  v_lshlrev_b32 {vr(vX)}, 4, {vr(vX)}")
    for i in range(4):
        A(f"  v_mov_b32 {vr(W+i)}, -1")
    A(f"  s_mul_i32 s{sRec}, s2, {8*REC}")
    A(f"  s_add_u32 s54, s{sRec}, 1024")
    A(f"  buffer_store_dwordx4 {vr(W,4)}, {vr(vX)}, s[56:59], s{sRec} offen {xpol}")
    for i in range(4):
        A(f"  buffer_store_dwordx4 {vr(W,4)}, {vr(vX)}, s[56:59], s54 offen offset:{1024*i} {xpol}")
    A("  s_barrier")
    A("  s_waitcnt vmcnt(0)")
    if force:
        A(f"  s_cmp_eq_u32 s2, {force}")
        A("  s_cbranch_scc1 L_end")
    A(f"  v_add_u32 {vr(OLD)}, 1, {vr(OLD)}")
    A("  s_mov_b64 exec, 1")
    A(f"  buffer_store_dword {vr(OLD)}, off, s[56:59], s70 {xpol}")
    A("  s_mov_b64 exec, -1")
    A("  s_cmp_lg_u32 s2, 0")
    A("  s_cbranch_scc1 L_hdone")
    A(f"  s_mov_b32 s{sT}, {polls}")
    A("  s_waitcnt vmcnt(0)")
    A("L_watch:")
    A(f"  buffer_load_dwordx4 {vr(CU,4)}, {vr(vMn)}, s[56:59], s71 offen {xpol}")
    A(f"  s_mov_b64 s[{sBad}:{sBad+1}], 0")
    A("  s_waitcnt vmcnt(0)")
    for i in range(4):
        A(f"  v_cmp_eq_u32 vcc, {vr(SN+i)}, {vr(CU+i)}")
        A(f"  s_or_b64 s[{sBad}:{sBad+1}], s[{sBad}:{sBad+1}], vcc")
    A("  s_cbranch_scc0 L_goahead")
    A(f"  s_mov_b64 exec, s[{sBad}:{sBad+1}]")
    A(f"  s_sub_u32 s{sT}, s{sT}, 1")
    A(f"  s_cmp_lg_u32 s{sT}, 0")
    A("  s_cbranch_scc1 L_watch")
    A("  s_endpgm")
    A("L_goahead:")
    A("  s_mov_b64 exec, 1")
    A(f"  v_mov_b32 {vr(vX)}, 0")
    A(f"  v_mov_b32 {vr(vY)}, 1")
    A(f"  global_store_dword {vr(vX)}, {vr(vY)}, s[28:29] offset:{OKOFF} {xpol}")
    if stamps:
        A("  s_waitcnt vmcnt(0)")
        A("  s_memrealtime  s[78:79]")
        A("  s_waitcnt lgkmcnt(0)")
        A("  s_sub_u32 s78, s78, s76")
        A(f"  v_mov_b32 {vr(vY)}, s78")
        A(f"  global_store_dword {vr(vX)}, {vr(vY)}, s[28:29] offset:{OKOFF-4}")
        A(f"  v_mov_b32 {vr(vY)}, s{sT}")
        A(f"  global_store_dword {vr(vX)}, {vr(vY)}, s[28:29] offset:{OKOFF-8}")
    A("L_hdone:")
    if warm:
        A("  s_setprio 0")
        A("  s_mov_b64 exec, 0")
        A("  s_branch L_warm")
    else:
        A("  s_endpgm")
    A('.section .rodata,"a"')
    A(".p2align 6")
    A(f".amdhsa_kernel {kname}")
    A(f"  .amdhsa_next_free_vgpr {NV}")
    A(f"  .amdhsa_next_free_sgpr {96 if (stamps or padto) else 74}")
    A(f"  .amdhsa_accum_offset {(NV+3)//4*4}")
    A("  .amdhsa_group_segment_fixed_size 0")
    A("  .amdhsa_kernarg_size 112")
    A("  .amdhsa_user_sgpr_count 2")
    A("  .amdhsa_user_sgpr_kernarg_segment_ptr 1")
    A("  .amdhsa_system_sgpr_workgroup_id_x 1")
    A("  .amdhsa_float_denorm_mode_32 3")
    A(".end_amdhsa_kernel")
    return "\n".join(L) + "\n"

if __name__ == "__main__":
    out = sys.argv[1]
    kw = dict(a.split("=", 1) for a in sys.argv[2:])
    for k in list(kw):
        if kw[k] in ("True", "False"):
            kw[k] = kw[k] == "True"
    open(out, "w").write(gen(**kw))
```

```python
import sys, struct, math

NAME = "standalone__kv_cache_quant_pre_rope_vs_post_rope__sampling"
HEADER = open("cdna_kernels/%s.s.ref" % NAME).read().split("; Override launch")[0]

def f32(x):
    return "0x%08x" % struct.unpack("<I", struct.pack("<f", x))[0]

class Regs:
    def __init__(self, start):
        self.n = start
    def alloc(self, cnt, align=1):
        self.n = (self.n + align - 1) // align * align
        r = self.n
        self.n += cnt
        return r

def vr(a, n=1):
    return f"v{a}" if n == 1 else f"v[{a}:{a+n-1}]"

DOC = """\
;
; Split-key attention.  Workgroup wg: head = %s, split = %s; waves 0-3 take 16 steps of 16 keys each.
;   go-ahead a counter in d_debug picks the last of the four instead."""

def gen(kvpol="nt", cspol="", outpol="", smallpol="", stamps=False, padto=0, xpol="sc1", force=0, slotk=3, slotstride=4352,
        polls=24, specpos=1, trace=False, seq="01a2b3c|d", warm=2, codepf=0, den=0, wv=1, nfirst=2, n1=16, wmap=0, kfirst=1, win=0, early=0, tailmix=1, pubafter=0, touch=0, n2=4, dwg=-1, dus=0):
    padto, force, slotk, slotstride, polls = int(padto), int(force), int(slotk), int(slotstride), int(polls)
    specpos, warm, codepf, den, wv = int(specpos), int(warm), int(codepf), int(den), int(wv)
    nfirst, n1, wmap, kfirst = int(nfirst), int(n1), int(wmap), int(kfirst)
    win, early, tailmix, pubafter = int(win), int(early), int(tailmix), int(pubafter)
    touch, n2 = int(touch), int(n2)
    assert n2 % 4 == 0
    dwg, dus = int(dwg), float(dus)
    assert warm in (0, 2)
    NW = 4
    NWG = 256
    NT = 16
    ROW = 272
    WREG = 16 * ROW
    SCB = NW * WREG
    QB = SCB + 1024 * 16 + 1024
    LDS = QB + 8 * ROW
    OROW = 528
    MLOFF = 8 * OROW
    REC = 640
    SLOTS = NWG * 8 * REC
    WSUSE = SLOTS + (NWG >> slotk) * slotstride
    OKOFF = 252
    kname = NAME + "_kernel"
    L = []
    A = L.append
    A(HEADER.rstrip("\n"))
    A(f"; @launch grid=({NWG},1,1) block=({NW*64+64},1,1) lds={LDS}")
    A(DOC % (('(wg >> 3) * 2 + (wg & 1)', '(wg >> 1) & 3') if wmap else ('wg >> 2', 'wg & 3')))
    A('.amdgcn_target "amdgcn-amd-amdhsa--gfx950"')
    A(".text")
    A(f".globl {kname}")
    A(".p2align 8")
    A(f".type {kname},@function")
    A(f"{kname}:")

    R = Regs(1)
    vT = 0
    vC, vG = R.alloc(1), R.alloc(1)
    vKo, vCo, vLw, vLr, vSc = (R.alloc(1) for _ in range(5))
    vM = R.alloc(2, 2)
    vL = vM + 1
    vAl = R.alloc(2, 2)
    vMn = R.alloc(1)
    vX, vY, vRa = R.alloc(1), R.alloc(1), R.alloc(1)
    K = R.alloc(32, 4)
    CS = R.alloc(32, 4)
    V = R.alloc(32, 4)
    SC = R.alloc(16, 4)
    Q = R.alloc(16, 4)
    O = R.alloc(32, 4)
    F = R.alloc(8, 4)
    T = R.alloc(8, 4)
    W = R.alloc(4, 4)
    G = R.alloc(16, 4)
    VA = R.alloc(16, 4)
    AF = R.alloc(16, 4)
    S = R.alloc(4, 4)
    P = R.alloc(2, 2)
    vRb, vEw, vEm, vEr, vEs = (R.alloc(1) for _ in range(5))
    vTr = R.alloc(1) if trace else None
    NV = R.n
    assert NV <= 256
    sK, sC, sT, sW = 48, 49, 50, 3
    sSelLo, sSelHi, sScale, sHead, sHb, sOff = 51, 52, 53, 60, 61, 62
    sRec = 64
    sBad = 68
    sOk = 72
    nstamp = [0]
    def stamp():
        if stamps:
            A(f"  s_memrealtime s[{76+2*nstamp[0]}:{77+2*nstamp[0]}]")
            nstamp[0] += 1

    def ld_k(j):
        return [f"  buffer_load_dwordx4 {vr(K+8*j+4*h,4)}, {vr(vKo)}, s[32:35], s{sK} offen offset:{512*j+256*h} {kvpol}" for h in range(2)]
    def ld_tab(j, t, h, so):
        return f"  buffer_load_dwordx2 {vr(CS+8*j+4*t+2*h,2)}, {vr(vCo)}, s[{40+4*t}:{43+4*t}], s{so} offen offset:{256*j+128*h} {cspol}"
    def ld_cs(j):
        return [ld_tab(j, t, h, sC) for t in range(2) for h in range(2)]
    def ld_v(q):
        jp, h = q >> 1, q & 1
        return [f"  buffer_load_dwordx4 {vr(V+8*j+4*h,4)}, {vr(vKo)}, s[36:39], s{sK} offen offset:{512*j+256*h} {kvpol}"
                for j in (2*jp, 2*jp+1)]
    cons = [c for c in seq if c != "|"]
    def site(c):
        if c.isalpha():
            return ld_v(ord(c) - 97)
        k, t = ld_k(int(c)), ld_cs(int(c))
        return [k[0]] + t[:2] + [k[1]] + t[2:] if wv else k + t
    sites = [site(c) for c in cons]
    total = sum(len(x) for x in sites)
    first = [t for x in sites[:nfirst] for t in x]
    nfirst_v = any("s[36:39]" in t for t in first)
    rest = [t for x in sites[nfirst:] for t in x]
    if kfirst:
        first = [t for x in sites for t in x if "s[32:35]" in t]
        nfirst_v = False
        rest = [t for x in sites for t in x if "s[32:35]" not in t]
        if kfirst == 2:
            fill = f"  buffer_load_dword {vr(S)}, off, s[40:43], s{sC}"
            rest = [t for t in sites[0] if "s[32:35]" not in t] + [fill if "s[32:35]" in t else t for x in sites[1:] for t in x]
    def advance():
        A(f"  s_add_u32 s{sOff}, s{sOff}, 0x20000")
        A(f"  s_and_b32 s{sOff}, s{sOff}, 0x1fffff")
        A(f"  s_add_u32 s{sK}, s{sOff}, s{sHb}")
        A(f"  s_lshr_b32 s{sC}, s{sOff}, 1")
    def read_sc():
        for j in range(4):
            A(f"  ds_read_b128 {vr(SC+4*j,4)}, {vr(vSc)} offset:{16*j}")
        A(f"  v_add_u32 {vr(vSc)}, {256*NW}, {vr(vSc)}")
    def clear_acc():
        return [f"  v_mov_b32 {vr(O+i)}, 0" for i in range(32)] + [
            f"  v_mov_b32 {vr(vM)}, {f32(-3.0e38)}", f"  v_mov_b32 {vr(vL)}, 0", f"  s_mov_b32 s{sT}, {NT}"]
    def st_record(o, ml):
        A(f"  buffer_store_dwordx4 {vr(o,4)}, {vr(vRa)}, s[56:59], s{sRec} offen {xpol}")
        A("  s_mov_b32 exec_lo, 1")
        A("  s_mov_b32 exec_hi, 1")
        A(f"  buffer_store_dwordx2 {vr(ml,2)}, {vr(vRb)}, s[56:59], s{sRec} offen offset:512 {xpol}")
        A("  s_mov_b64 exec, -1")

    A("  s_load_dwordx16 s[4:19], s[0:1], 0")
    A("  s_load_dwordx8 s[20:27], s[0:1], 64")
    A("  s_load_dwordx4 s[28:31], s[0:1], 96")
    if padto:
        A("  s_memrealtime s[74:75]")
    stamp()
    A(f"  s_cmpk_ge_u32 s2, {NWG}")
    A("  s_cbranch_scc1 L_end")
    if dwg >= 0:
        A(f"  s_cmp_lg_u32 s2, {dwg}")
        A("  s_cbranch_scc1 L_nodelay")
        A("  s_memrealtime  s[88:89]")
        A("L_delay:")
        A("  s_memrealtime  s[90:91]")
        A("  s_waitcnt lgkmcnt(0)")
        A("  s_sub_u32 s90, s90, s88")
        A(f"  s_cmp_lt_u32 s90, {int(dus*100)}")
        A("  s_cbranch_scc1 L_delay")
        A("L_nodelay:")
    A(f"  v_readfirstlane_b32 s{sW}, v0")
    A(f"  v_and_b32 {vr(vC)}, 15, v0")
    A(f"  v_bfe_u32 {vr(vG)}, v0, 4, 2")
    A(f"  v_lshlrev_b32 {vr(vKo)}, 4, {vr(vC)}")
    A(f"  v_lshl_add_u32 {vr(vKo)}, {vr(vG)}, 11, {vr(vKo)}")
    A(f"  s_lshr_b32 s{sW}, s{sW}, 6")
    A(f"  s_cmp_eq_u32 s{sW}, {NW}")
    A("  s_cbranch_scc1 L_helper")
    A("  s_andn2_b32 s54, s2, 15")
    if wmap:
        A("  s_bfe_u32 s55, s2, 0x20001")
    else:
        A("  s_and_b32 s55, s2, 3")
    A("  s_lshl2_add_u32 s54, s55, s54")
    A(f"  s_add_u32 s54, s54, s{sW}")
    A(f"  s_lshl_b32 s{sOff}, s54, 13")
    if wmap:
        A(f"  s_lshr_b32 s{sHead}, s2, 3")
        A("  s_and_b32 s54, s2, 1")
        A(f"  s_lshl1_add_u32 s{sHead}, s{sHead}, s54")
    else:
        A(f"  s_lshr_b32 s{sHead}, s2, 2")
    A(f"  s_lshl_b32 s{sHb}, s{sHead}, 21")
    A(f"  s_add_u32 s{sK}, s{sOff}, s{sHb}")
    A(f"  v_lshrrev_b32 {vr(vCo)}, 1, {vr(vKo)}")
    A(f"  s_lshr_b32 s{sC}, s{sOff}, 1")
    A("  s_lshl_b32 s34, 1, 27")
    A("  s_mov_b32 s35, 0x20000")
    A("  s_lshl_b32 s42, 1, 20")
    A("  s_mov_b32 s43, s35")
    A("  s_mov_b64 s[46:47], s[42:43]")
    if nfirst_v:
        A("  s_mov_b64 s[38:39], s[34:35]")
    A("  s_waitcnt lgkmcnt(0)")
    A("  s_mov_b64 s[32:33], s[6:7]")
    L.extend(t for t in first if "s[32:35]" in t)
    if nfirst_v:
        A("  s_mov_b64 s[36:37], s[12:13]")
        L.extend(t for t in first if "s[36:39]" in t)
    A("  s_mov_b64 s[40:41], s[22:23]")
    A("  s_mov_b64 s[44:45], s[24:25]")
    L.extend(t for t in first if "dwordx2" in t)
    stamp()
    A(f"  v_lshrrev_b32 {vr(vY)}, 5, {vr(vT)}")
    A(f"  v_and_b32 {vr(vMn)}, 31, {vr(vT)}")
    A(f"  v_mul_u32_u24 {vr(vRb)}, {REC}, {vr(vY)}")
    A(f"  v_lshl_add_u32 {vr(vRa)}, {vr(vMn)}, 4, {vr(vRb)}")
    A("  s_mov_b64 s[56:57], s[30:31]")
    A(f"  s_mov_b32 s58, {NWG*8*REC}")
    A("  s_mov_b32 s59, 0x20000")
    A(f"  s_mul_i32 s{sRec}, s2, {8*REC}")
    if not nfirst_v:
        A("  s_mov_b64 s[36:37], s[12:13]")
        A("  s_mov_b64 s[38:39], s[34:35]")
    A(f"  s_lshr_b32 s54, s2, 4")
    A(f"  v_lshrrev_b32 {vr(vX)}, 4, {vr(vT)}")
    A(f"  v_add_u32 {vr(vX)}, s54, {vr(vX)}")
    A(f"  v_and_b32 {vr(vX)}, 15, {vr(vX)}")
    A(f"  v_lshlrev_b32 {vr(vX)}, 9, {vr(vX)}")
    A(f"  v_lshl_add_u32 {vr(vX)}, {vr(vC)}, 3, {vr(vX)}")
    A(f"  s_lshl_b32 s54, s{sHead}, 13")
    A("  s_lshl_b32 s55, s55, 7")
    A("  s_add_u32 s54, s54, s55")
    A(f"  v_add_u32 {vr(vX)}, s54, {vr(vX)}")
    A(f"  v_lshlrev_b32 {vr(vEs)}, 3, {vr(vY)}")
    A(f"  v_mul_u32_u24 {vr(vEr)}, {OROW}, {vr(vY)}")
    A(f"  v_lshl_add_u32 {vr(vEr)}, {vr(vMn)}, 4, {vr(vEr)}")
    A(f"  v_lshlrev_b32 {vr(vY)}, 8, {vr(vY)}")
    A(f"  v_lshl_add_u32 {vr(vY)}, {vr(vMn)}, 2, {vr(vY)}")
    A(f"  s_lshl_b32 s55, s{sHead}, 11")
    A("  s_add_u32 s4, s4, s55")
    A("  s_addc_u32 s5, s5, 0")
    SR, QR = AF, AF + 8
    for i, p in enumerate((8, 10, 14, 16)):
        A(f"  global_load_dwordx2 {vr(SR+2*i,2)}, {vr(vX)}, s[{p}:{p+1}] {smallpol}")
    for i, p in enumerate((4, 18, 20)):
        for h in range(2):
            A(f"  global_load_dword {vr(QR+2*i+h)}, {vr(vY)}, s[{p}:{p+1}] offset:{128*h} {smallpol}")
    setup = []
    B = setup.append
    B(f"  s_mov_b32 s{sSelLo}, 0x05040100")
    B(f"  s_mov_b32 s{sSelHi}, 0x07060302")
    B(f"  s_mov_b32 s{sScale}, {f32(math.log2(math.e) / math.sqrt(128.0) * (2.0**49 if den else 1.0))}")
    for k in range(1, 4):
        B(f"  s_xor_b32 s54, s2, {k << wmap}")
        B(f"  s_mul_i32 s{sRec+k}, s54, {8*REC}")
    B(f"  s_mul_i32 s54, s{sW}, {WREG}")
    B(f"  v_mul_u32_u24 {vr(vLw)}, {4*ROW}, {vr(vG)}")
    B(f"  v_lshl_add_u32 {vr(vLw)}, {vr(vC)}, 4, {vr(vLw)}")
    B(f"  v_add_u32 {vr(vLw)}, s54, {vr(vLw)}")
    B(f"  v_mul_u32_u24 {vr(vLr)}, {ROW}, {vr(vC)}")
    B(f"  v_lshl_add_u32 {vr(vLr)}, {vr(vG)}, 6, {vr(vLr)}")
    B(f"  v_add_u32 {vr(vLr)}, s54, {vr(vLr)}")
    B(f"  v_and_b32 {vr(vMn)}, 7, {vr(vC)}")
    B(f"  v_lshl_add_u32 {vr(vEm)}, {vr(vMn)}, 3, s54")
    B(f"  v_mul_u32_u24 {vr(vEw)}, {OROW}, {vr(vMn)}")
    B(f"  v_lshl_add_u32 {vr(vEw)}, {vr(vG)}, 6, {vr(vEw)}")
    B(f"  v_lshrrev_b32 {vr(vX)}, 3, {vr(vC)}")
    B(f"  v_lshl_add_u32 {vr(vEw)}, {vr(vX)}, 8, {vr(vEw)}")
    B(f"  v_add_u32 {vr(vEw)}, s54, {vr(vEw)}")
    B(f"  v_mul_u32_u24 {vr(vMn)}, {ROW}, {vr(vMn)}")
    B(f"  v_lshl_add_u32 {vr(vMn)}, {vr(vG)}, 6, {vr(vMn)}")
    B(f"  s_lshl_b32 s54, s{sW}, 8")
    B(f"  s_add_u32 s54, s54, {SCB}")
    B(f"  v_lshl_add_u32 {vr(vSc)}, {vr(vG)}, 6, s54")
    B(f"  v_lshrrev_b32 {vr(vY)}, 5, {vr(vT)}")
    B(f"  v_mul_u32_u24 {vr(vY)}, {ROW}, {vr(vY)}")
    B(f"  v_and_b32 {vr(vX)}, 30, {vr(vT)}")
    B(f"  v_lshl_add_u32 {vr(vY)}, {vr(vX)}, 3, {vr(vY)}")
    B(f"  v_and_b32 {vr(vX)}, 1, {vr(vT)}")
    B(f"  v_lshl_add_u32 {vr(vY)}, {vr(vX)}, 2, {vr(vY)}")
    B(f"  v_lshlrev_b32 {vr(vX)}, 6, {vr(vT)}")
    setup += clear_acc()
    cs_all, v0l, v1l = rest[:n1], rest[n1:n1+n2], rest[n1+n2:]
    ncs = len(cs_all)
    per = -(-len(setup) // ncs)
    for i, t in enumerate(cs_all):
        A(t)
        L.extend(setup[per*i:per*i+per])
    stamp()
    nper = len(v0l) // 4
    A(f"  s_waitcnt vmcnt({ncs+6})")
    stamp()
    for e in range(4):
        L.extend(v0l[nper*e:nper*e+nper])
        for i in range(4):
            src = SR + 2*i + e // 2
            if e % 2 == 0:
                A(f"  v_lshlrev_b32 {vr(G+4*e+i)}, 16, {vr(src)}")
            else:
                A(f"  v_and_b32 {vr(G+4*e+i)}, 0xffff0000, {vr(src)}")
        A(f"  v_mul_f32 {vr(G+4*e+1)}, -{vr(G+4*e)}, {vr(G+4*e+1)}")
        A(f"  v_mul_f32 {vr(G+4*e+3)}, -{vr(G+4*e+2)}, {vr(G+4*e+3)}")
        if den:
            for i in range(4):
                A(f"  v_mul_f32 {vr(G+4*e+i)}, {f32(2.0**-49 if i % 2 else 2.0**100)}, {vr(G+4*e+i)}")
        A(f"  ds_write_b128 {vr(vX)}, {vr(G+4*e,4)} offset:{SCB+16*e}")
    A(f"  s_waitcnt vmcnt({ncs+len(v0l)})")
    for e, sel in enumerate((sSelLo, sSelHi)):
        A(f"  v_perm_b32 {vr(F+e)}, {vr(QR+1)}, {vr(QR)}, s{sel}")
        A(f"  v_perm_b32 {vr(T+e)}, {vr(QR+4)}, {vr(QR+2)}, s{sel}")
        A(f"  v_perm_b32 {vr(T+2+e)}, {vr(QR+3)}, {vr(QR+5)}, s{sel}")
    for e in range(2):
        A(f"  v_dot2_f32_bf16 {vr(T+e)}, {vr(F+e)}, {vr(T+e)}, 0 neg_hi:[0,1,0]")
    for e in range(2):
        A(f"  v_dot2_f32_bf16 {vr(T+2+e)}, {vr(F+e)}, {vr(T+2+e)}, 0")
    A("  s_nop 2")
    A(f"  v_cvt_pk_bf16_f32 {vr(F)}, {vr(T)}, {vr(T+1)}")
    A(f"  v_cvt_pk_bf16_f32 {vr(F+1)}, {vr(T+2)}, {vr(T+3)}")
    A(f"  ds_write_b32 {vr(vY)}, {vr(F)} offset:{QB}")
    A(f"  ds_write_b32 {vr(vY)}, {vr(F+1)} offset:{QB+8}")
    A("  s_waitcnt lgkmcnt(0)")
    A("  s_barrier")
    read_sc()
    for i in range(4):
        A(f"  ds_read_b128 {vr(Q+4*i,4)}, {vr(vMn)} offset:{QB+16*i}")
    L.extend(v1l)
    advance()
    lastk = max(n for n, c in enumerate(cons) if c.isdigit())
    if kfirst == 1:
        A(f"  s_waitcnt vmcnt({sum(len([t for t in x if 's[32:35]' not in t]) for x in sites[lastk:])})")
    stamp()

    PML, PO = K + 8, K + 16
    def ld_partners():
        for k in range(1, 4):
            A(f"  buffer_load_dwordx2 {vr(PML+2*(k-1),2)}, {vr(vRb)}, s[56:59], s{sRec+k} offen offset:512 {xpol}")
            A(f"  buffer_load_dwordx4 {vr(PO+4*(k-1),4)}, {vr(vRa)}, s[56:59], s{sRec+k} offen {xpol}")
    def hop(lab):
        if warm:
            A(f"  s_cbranch_execz {lab}")
    def tile(last):
        def wait(n):
            after = sum(len(x) for x in sites[n+1:]) if last else total - len(sites[n])
            if touch == 2 and last and 0 < n:
                after += 2
            if early and last and n >= seq.index("|"):
                after += 6
            A(f"  s_waitcnt vmcnt({after})" + (" lgkmcnt(0)" if n == 0 else ""))
        def prefetch(n):
            if not last:
                for t in sites[n]:
                    if win and "dwordx4" in t:
                        A(f"  s_waitcnt vmcnt({win})")
                    A(t)
        def dequant(dst, src, cnt, sc):
            for i in range(cnt // 2):
                A(f"  v_pk_fma_f32 {vr(dst+2*i,2)}, {vr(src+2*i,2)}, {vr(sc,2)}, {vr(sc,2)} op_sel:[0,0,1] op_sel_hi:[1,0,1]")
        def k_row(n, j):
            kj, cj = K + 8*j, CS + 8*j
            if trace and n == 0:
                A("  s_memrealtime  s[94:95]")
            wait(n)
            if trace and n == 0:
                A(f"  s_mov_b32 m0, s{sT}")
                A(f"  v_writelane_b32 {vr(vTr)}, s94, m0")
            if last and n == 0:
                A(f"  s_load_dword s{sOk}, s[28:29], {OKOFF}")
                if touch == 2:
                    A(f"  v_mov_b32 {vr(vX)}, 0")
                    A(f"  global_load_dword {vr(vSc)}, {vr(vX)}, s[26:27]")
                    A(f"  global_load_dword {vr(vSc)}, {vr(vX)}, s[30:31] offset:576")
                A("L_warm:")
            if den:
                dequant(F, kj, 8, SC+4*j)
            else:
                for i in range(8):
                    A(f"  v_cvt_f32_i32 {vr(F+i)}, {vr(kj+i)}")
            for r in range(4):
                sel = sSelLo if r % 2 == 0 else sSelHi
                A(f"  v_perm_b32 {vr(T+r)}, {vr(cj+4+r//2)}, {vr(cj+r//2)}, s{sel}")
            for r in range(4):
                sel = sSelLo if r % 2 == 0 else sSelHi
                A(f"  v_perm_b32 {vr(T+4+r)}, {vr(cj+2+r//2)}, {vr(cj+6+r//2)}, s{sel}")
            prefetch(n)
            if not den:
                dequant(F, F, 8, SC+4*j)
            for r in range(4):
                A(f"  v_cvt_pk_bf16_f32 {vr(F+r)}, {vr(F+r)}, {vr(F+4+r)}")
            for r in range(4):
                A(f"  v_dot2_f32_bf16 {vr(T+r)}, {vr(F+r)}, {vr(T+r)}, 0 neg_hi:[0,1,0]")
            for r in range(4):
                A(f"  v_dot2_f32_bf16 {vr(T+4+r)}, {vr(F+r)}, {vr(T+4+r)}, 0")
            for r in range(4):
                A(f"  v_cvt_pk_bf16_f32 {vr(W+r)}, {vr(T+2*r)}, {vr(T+2*r+1)}")
            A(f"  ds_write_b128 {vr(vLw)}, {vr(W,4)} offset:{ROW*j}")
        def v_first(n, q):
            jp, h = q >> 1, q & 1
            wait(n)
            for e in range(2):
                src = V + 8*(2*jp+e) + 4*h
                if den:
                    dequant(G+4*e, src, 4, SC+4*(2*jp+e)+2)
                else:
                    for i in range(4):
                        A(f"  v_cvt_f32_i32 {vr(G+4*e+i)}, {vr(src+i)}")
        def v_second(q):
            jp, h = q >> 1, q & 1
            if not den:
                for e in range(2):
                    dequant(G+4*e, G+4*e, 4, SC+4*(2*jp+e)+2)
            for r in range(4):
                A(f"  v_cvt_pk_bf16_f32 {vr(VA+2*(4*h+r)+jp)}, {vr(G+r)}, {vr(G+4+r)}")
        def consume(n, c, mid=None):
            if c.isdigit():
                k_row(n, int(c))
                if n == lastk:
                    for i in range(4):
                        A(f"  ds_read_b128 {vr(AF+4*i,4)}, {vr(vLr)} offset:{16*i}")
            else:
                v_first(n, ord(c) - 97)
                prefetch(n)
                if mid:
                    mid()
                v_second(ord(c) - 97)
        def qk():
            A("  s_waitcnt lgkmcnt(0)")
            for i in range(4):
                c = "0" if i == 0 else vr(S, 4)
                A(f"  v_mfma_f32_16x16x32_bf16 {vr(S,4)}, {vr(AF+4*i,4)}, {vr(Q+4*i,4)}, {c}")
        nbar = seq.index("|")
        assert cons[nbar-1].isalpha() and nbar - 1 > lastk
        for n in range(nbar):
            consume(n, cons[n], qk if n == nbar - 1 else None)
        if den:
            A("  s_nop 3")
        def first_look():
            hop("L_hop0")
            ld_partners()
            A("L_hop0:")
        if last and early == 1:
            first_look()
        A(f"  v_max3_f32 {vr(vX)}, {vr(S)}, {vr(S+1)}, {vr(S+2)}")
        A(f"  v_max_f32 {vr(vX)}, {vr(vX)}, {vr(S+3)}")
        A(f"  v_mov_b32 {vr(vY)}, {vr(vX)}")
        A("  s_nop 1")
        A(f"  v_permlane32_swap_b32 {vr(vX)}, {vr(vY)}")
        A(f"  v_max_f32 {vr(vX)}, {vr(vX)}, {vr(vY)}")
        A(f"  v_mov_b32 {vr(vY)}, {vr(vX)}")
        A("  s_nop 1")
        A(f"  v_permlane16_swap_b32 {vr(vX)}, {vr(vY)}")
        A(f"  v_max_f32 {vr(vX)}, {vr(vX)}, {vr(vY)}")
        A(f"  v_mul_f32 {vr(vX)}, s{sScale}, {vr(vX)}")
        A(f"  v_max_f32 {vr(vMn)}, {vr(vM)}, {vr(vX)}")
        A(f"  v_sub_f32 {vr(vAl)}, {vr(vM)}, {vr(vMn)}")
        for r in range(4):
            A(f"  v_fma_f32 {vr(S+r)}, {vr(S+r)}, s{sScale}, -{vr(vMn)}")
        A(f"  v_exp_f32 {vr(vAl)}, {vr(vAl)}")
        for r in range(4):
            A(f"  v_exp_f32 {vr(S+r)}, {vr(S+r)}")
        A(f"  v_mov_b32 {vr(vM)}, {vr(vMn)}")
        A(f"  v_fma_f32 {vr(vL)}, {vr(vL)}, {vr(vAl)}, {vr(S)}")
        A(f"  v_add_f32 {vr(vX)}, {vr(S+1)}, {vr(S+2)}")
        A(f"  v_add_f32 {vr(vL)}, {vr(vL)}, {vr(S+3)}")
        A(f"  v_cvt_pk_bf16_f32 {vr(P)}, {vr(S)}, {vr(S+1)}")
        A(f"  v_cvt_pk_bf16_f32 {vr(P+1)}, {vr(S+2)}, {vr(S+3)}")
        A(f"  v_add_f32 {vr(vL)}, {vr(vL)}, {vr(vX)}")
        for i in range(16):
            A(f"  v_pk_mul_f32 {vr(O+2*i,2)}, {vr(O+2*i,2)}, {vr(vAl,2)} op_sel_hi:[1,0]")
        if last:
            A(f"  v_mov_b32 {vr(vY)}, {vr(vL)}")
            A(f"  v_cmp_lt_u32 vcc, 7, {vr(vC)}")
            A("  s_mov_b64 s[36:37], s[26:27]")
            A(f"  v_permlane32_swap_b32 {vr(vL)}, {vr(vY)}")
            A(f"  v_add_f32 {vr(vL)}, {vr(vL)}, {vr(vY)}")
            A(f"  v_mov_b32 {vr(vY)}, {vr(vL)}")
            A(f"  s_mov_b32 s38, {64*8*128*2}")
            A(f"  s_lshl_b32 s71, s{sHead}, 11")
            A(f"  v_permlane16_swap_b32 {vr(vL)}, {vr(vY)}")
            A(f"  v_add_f32 {vr(vL)}, {vr(vL)}, {vr(vY)}")
            A(f"  v_lshlrev_b32 {vr(vX)}, 3, {vr(vT)}")
            A(f"  ds_write_b64 {vr(vEm)}, {vr(vM,2)} offset:{MLOFF}")
        if last and early == 2:
            first_look()
        if last and tailmix:
            assert cons[nbar:] == ["d"]
            for i in range(4):
                A(f"  v_mfma_f32_16x16x16_bf16 {vr(O+4*i,4)}, {vr(VA+2*i,2)}, {vr(P,2)}, {vr(O+4*i,4)}")
        for n in range(nbar, len(cons)):
            consume(n, cons[n])
        def pv(i):
            A(f"  v_mfma_f32_16x16x16_bf16 {vr(O+4*i,4)}, {vr(VA+2*i,2)}, {vr(P,2)}, {vr(O+4*i,4)}")
        if not last:
            read_sc()
        else:
            A("  s_nop 1")
        for i in range(4 if (last and tailmix) else 0, 8):
            pv(i)
    A("L_loop:")
    tile(False)
    advance()
    if stamps:
        A(f"  s_cmp_lg_u32 s{sT}, {NT}")
        A("  s_cbranch_scc1 L_nost")
        stamp()
        A("L_nost:")
    A(f"  s_sub_u32 s{sT}, s{sT}, 1")
    A(f"  s_cmp_lg_u32 s{sT}, 1")
    A("  s_cbranch_scc1 L_loop")
    tile(True)

    stamp()
    A("  s_nop 4")
    for rho in range(4):
        for r in range(4):
            A(f"  v_cndmask_b32 {vr(G+4*rho+r)}, {vr(O+4*r+rho)}, {vr(O+16+4*r+rho)}, vcc")
        A(f"  ds_write_b128 {vr(vEw)}, {vr(G+4*rho,4)} offset:{16*rho}")
    def unfilled():
        regs = [PML+i for i in range(6)] + [PO+i for i in range(12)]
        for i in range(6):
            A(f"  v_max3_u32 {vr(T+i)}, {vr(regs[3*i])}, {vr(regs[3*i+1])}, {vr(regs[3*i+2])}")
        A(f"  v_max3_u32 {vr(T)}, {vr(T)}, {vr(T+1)}, {vr(T+2)}")
        A(f"  v_max3_u32 {vr(T+3)}, {vr(T+3)}, {vr(T+4)}, {vr(T+5)}")
        A(f"  v_max_u32 {vr(T)}, {vr(T)}, {vr(T+3)}")
        A(f"  v_cmp_eq_u32 vcc, -1, {vr(T)}")
    ML, OP = VA, AF
    def lds_reads():
        for w in range(4):
            A(f"  ds_read_b64 {vr(ML+2*w,2)}, {vr(vEs)} offset:{MLOFF + w*WREG}")
        for w in range(4):
            A(f"  ds_read_b128 {vr(OP+4*w,4)}, {vr(vEr)} offset:{w*WREG}")
    def merge_waves():
        A("  s_waitcnt lgkmcnt(4)")
        A(f"  v_max3_f32 {vr(vM)}, {vr(ML)}, {vr(ML+2)}, {vr(ML+4)}")
        A(f"  v_max_f32 {vr(vM)}, {vr(vM)}, {vr(ML+6)}")
        for w in range(4):
            A(f"  v_sub_f32 {vr(ML+2*w)}, {vr(ML+2*w)}, {vr(vM)}")
        for w in range(4):
            A(f"  v_exp_f32 {vr(ML+2*w)}, {vr(ML+2*w)}")
        A(f"  v_mul_f32 {vr(vL)}, {vr(ML)}, {vr(ML+1)}")
        for w in range(1, 4):
            A(f"  v_fma_f32 {vr(vL)}, {vr(ML+2*w)}, {vr(ML+2*w+1)}, {vr(vL)}")
        A("  s_waitcnt lgkmcnt(0)")
        for r in range(2):
            A(f"  v_pk_mul_f32 {vr(F+2*r,2)}, {vr(OP+2*r,2)}, {vr(ML,2)} op_sel_hi:[1,0]")
        for w in range(1, 4):
            for r in range(2):
                A(f"  v_pk_fma_f32 {vr(F+2*r,2)}, {vr(OP+4*w+2*r,2)}, {vr(ML+2*w,2)}, {vr(F+2*r,2)} op_sel_hi:[1,0,1]")
    def merge_splits(nxt):
        ms = [vM, PML, PML+2, PML+4]
        os_ = [F, PO, PO+4, PO+8]
        A(f"  v_max3_f32 {vr(vMn)}, {vr(ms[0])}, {vr(ms[1])}, {vr(ms[2])}")
        A(f"  v_max_f32 {vr(vMn)}, {vr(vMn)}, {vr(ms[3])}")
        for k in range(4):
            A(f"  v_sub_f32 {vr(T+2*k)}, {vr(ms[k])}, {vr(vMn)}")
        for k in range(4):
            A(f"  v_exp_f32 {vr(T+2*k)}, {vr(T+2*k)}")
        for k in range(4):
            A(f"  v_mul_f32 {vr(T+2*k+1)}, {vr(T+2*k)}, {vr(ms[k]+1)}")
        A(f"  v_add_f32 {vr(T+1)}, {vr(T+1)}, {vr(T+3)}")
        A(f"  v_add_f32 {vr(T+5)}, {vr(T+5)}, {vr(T+7)}")
        A(f"  v_add_f32 {vr(T+1)}, {vr(T+1)}, {vr(T+5)}")
        if den:
            A(f"  v_mul_f32 {vr(T+1)}, {f32(2.0**-49)}, {vr(T+1)}")
        A(f"  v_rcp_f32 {vr(vAl)}, {vr(T+1)}")
        for k in range(4):
            for r in range(2):
                A(f"  v_pk_mul_f32 {vr(G+4*k+2*r,2)}, {vr(os_[k]+2*r,2)}, {vr(T+2*k,2)} op_sel_hi:[1,0]")
        for a, b in ((0, 1), (2, 3), (0, 2)):
            for r in range(2):
                A(f"  v_pk_add_f32 {vr(G+4*a+2*r,2)}, {vr(G+4*a+2*r,2)}, {vr(G+4*b+2*r,2)}")
        for r in range(2):
            A(f"  v_pk_mul_f32 {vr(G+2*r,2)}, {vr(G+2*r,2)}, {vr(vAl,2)} op_sel_hi:[1,0]")
        A(f"  v_cvt_pk_bf16_f32 {vr(W)}, {vr(G)}, {vr(G+1)}")
        A(f"  v_cvt_pk_bf16_f32 {vr(W+1)}, {vr(G+2)}, {vr(G+3)}")
        hop(nxt)
        A(f"  buffer_store_dwordx2 {vr(W,2)}, {vr(vX)}, s[36:39], s71 offen {outpol}")
    if early:
        A("  s_waitcnt vmcnt(0)")
        unfilled()
        A(f"  s_cmp_eq_u32 s{sOk}, 0")
        hop("L_hop1")
        A("  s_cbranch_scc1 L_notyet")
        A("  s_cbranch_vccnz L_notyet")
        A("  s_waitcnt lgkmcnt(0)")
        A("  s_barrier")
        A("L_hop1:")
        lds_reads()
        merge_waves()
        if stamps:
            A("  s_mov_b32 s70, 3")
            A(f"  s_memrealtime  s[{76+2*nstamp[0]}:{77+2*nstamp[0]}]")
        merge_splits("L_hop2")
        A("  s_branch L_done" if (stamps or padto) else "  s_endpgm")
    else:
        hop("L_hop2")
    A("L_notyet:")
    A("  s_waitcnt lgkmcnt(0)")
    A("  s_barrier")
    if specpos == 1:
        ld_partners()
    lds_reads()
    if specpos == 2:
        ld_partners()
    A("L_hop2:")
    merge_waves()
    def publish():
        for x in (vM, vL, F, F+1, F+2, F+3):
            A(f"  v_min_u32 {vr(x)}, -2, {vr(x)}")
        if not pubafter:
            hop("L_hop3")
        st_record(F, vM)
    if pubafter:
        stamp()
        A(f"  s_cmp_eq_u32 s{sOk}, 0")
        A("  s_waitcnt vmcnt(0)")
        unfilled()
        if stamps:
            A("  s_mov_b32 s70, 1")
        hop("L_final")
        A("  s_cbranch_scc1 L_late")
        A("  s_cbranch_vccnz L_late")
    else:
        publish()
        stamp()
        A(f"  s_cmp_eq_u32 s{sOk}, 0")
        A("  s_cbranch_scc1 L_slow")
        A("  s_waitcnt vmcnt(2)")
        A("L_hop3:")
        unfilled()
        if stamps:
            A("  s_mov_b32 s70, 1")
        hop("L_final")
        A("  s_cbranch_vccnz L_late")
    A("L_final:")
    merge_splits("L_walked")
    A("L_done:")
    if stamps:
        A("  s_waitcnt vmcnt(0)")
        stamp()
        A("  s_waitcnt lgkmcnt(0)")
        A(f"  s_lshl_b32 s54, s2, 2")
        A(f"  s_add_u32 s54, s54, s{sW}")
        A(f"  s_lshl_b32 s54, s54, 6")
        A(f"  s_add_u32 s54, s54, {16<<20}")
        A(f"  s_mov_b32 s58, {32<<20}")
        for i in range(nstamp[0]):
            A(f"  v_mov_b32 {vr(G+i)}, s{76+2*i}")
        A(f"  v_mov_b32 {vr(G+15)}, s70")
        A("  s_getreg_b32 s70, hwreg(HW_REG_XCC_ID)")
        A(f"  v_mov_b32 {vr(G+14)}, s70")
        A("  s_getreg_b32 s70, hwreg(HW_REG_HW_ID)")
        A(f"  v_mov_b32 {vr(G+13)}, s70")
        if trace:
            A(f"  s_lshl_b32 s55, s54, 1")
            A(f"  s_sub_u32 s55, s55, {8<<20}")
            A(f"  v_and_b32 {vr(vX)}, 63, {vr(vT)}")
            A(f"  v_lshlrev_b32 {vr(vX)}, 2, {vr(vX)}")
            A("  s_mov_b32 exec_hi, 0")
            A(f"  buffer_store_dword {vr(vTr)}, {vr(vX)}, s[56:59], s55 offen")
        A("  s_mov_b64 exec, 1")
        for i in range(4):
            A(f"  buffer_store_dwordx4 {vr(G+4*i,4)}, off, s[56:59], s54 offset:{16*i}")
    if padto:
        A("L_pad:")
        A("  s_memrealtime s[76:77]")
        A("  s_waitcnt lgkmcnt(0)")
        A("  s_sub_u32 s76, s76, s74")
        A(f"  s_cmp_lt_u32 s76, {padto*100}")
        A("  s_cbranch_scc1 L_pad")
    A("L_end:")
    A("  s_endpgm")

    A("L_late:")
    if pubafter:
        publish()
        A("  s_cbranch_scc1 L_slow")
    A("  s_waitcnt vmcnt(0)")
    A("L_reload:")
    ld_partners()
    A("  s_waitcnt vmcnt(0)")
    unfilled()
    if stamps:
        A("  s_mov_b32 s70, 2")
    A("  s_cbranch_vccz L_final")
    if stamps:
        A("  s_mov_b32 s70, 0")
    A("  s_branch L_done" if (stamps or padto) else "  s_endpgm")
    A("L_slow:")
    A(f"  v_mov_b32 {vr(vY)}, 0")
    A("  s_waitcnt vmcnt(0)")
    A(f"  global_load_dword {vr(K)}, {vr(vY)}, s[28:29] offset:{OKOFF} {xpol}")
    A("  s_waitcnt vmcnt(0)")
    A(f"  v_readfirstlane_b32 s54, {vr(K)}")
    A("  s_nop 3")
    A("  s_cmp_eq_u32 s54, 1")
    A("  s_cbranch_scc1 L_reload")
    A(f"  s_lshl2_add_u32 s54, s{sHead}, s{sW}")
    A("  s_and_b32 s55, s54, 7")
    A("  s_lshl_b32 s55, s55, 2")
    A("  s_lshr_b32 s54, s54, 3")
    A("  s_lshl_b32 s54, s54, 2")
    A(f"  v_mov_b32 {vr(vY)}, s54")
    A("  s_lshl_b32 s54, 1, s55")
    A(f"  v_mov_b32 {vr(K)}, s54")
    A("  s_mov_b64 exec, 1")
    A(f"  global_atomic_add {vr(K)}, {vr(vY)}, {vr(K)}, s[28:29] sc0 sc1")
    A("  s_waitcnt vmcnt(0)")
    A(f"  v_readfirstlane_b32 s54, {vr(K)}")
    A("  s_mov_b64 exec, -1")
    A("  s_nop 3")
    A("  s_lshr_b32 s54, s54, s55")
    A("  s_and_b32 s54, s54, 15")
    A("  s_cmp_eq_u32 s54, 3")
    A("  s_cbranch_scc1 L_reload")
    if stamps:
        A("  s_mov_b32 s70, 0")
    A("  s_branch L_done" if (stamps or padto) else "  s_endpgm")
    SN, CU, OLD = V, V + 4, V + 8
    A("L_helper:")
    A("  s_setprio 3")
    A(f"  v_and_b32 {vr(vX)}, 63, {vr(vT)}")
    A(f"  v_lshrrev_b32 {vr(vMn)}, {slotk-2}, {vr(vX)}")
    A(f"  v_mul_u32_u24 {vr(vMn)}, {slotstride}, {vr(vMn)}")
    A(f"  v_and_b32 {vr(vY)}, {(1 << (slotk-2)) - 1}, {vr(vX)}")
    A(f"  v_lshl_add_u32 {vr(vMn)}, {vr(vY)}, 4, {vr(vMn)}")
    A(f"  s_lshr_b32 s62, s2, {slotk}")
    A(f"  s_mul_i32 s62, s62, {slotstride}")
    A(f"  s_and_b32 s54, s2, {(1 << slotk) - 1}")
    A("  s_lshl2_add_u32 s62, s54, s62")
    A(f"  s_mov_b32 s63, {SLOTS}")
    A("  s_add_u32 s62, s62, s63")
    A(f"  s_mov_b32 s58, {WSUSE}")
    A("  s_mov_b32 s59, 0x20000")
    A("  s_cmp_lg_u32 s2, 0")
    A("  s_waitcnt lgkmcnt(0)")
    A("  s_mov_b64 s[56:57], s[30:31]")
    A("  s_cbranch_scc1 L_nosnap")
    A(f"  buffer_load_dwordx4 {vr(SN,4)}, {vr(vMn)}, s[56:59], s63 offen {xpol}")
    A("L_nosnap:")
    if codepf:
        A(f"  s_cmp_ge_u32 s2, {codepf}")
        A("  s_cbranch_scc1 L_nopf")
        A("  s_getpc_b64 s[54:55]")
        A("L_pc:")
        A(f"  s_sub_u32 s54, s54, L_pc-{kname}")
        A("  s_subb_u32 s55, s55, 0")
        A(f"  v_lshlrev_b32 {vr(vY)}, 7, {vr(vX)}")
        A(f"  v_cmp_gt_u32 vcc, L_pc-{kname}, {vr(vY)}")
        A("  s_and_saveexec_b64 s[68:69], vcc")
        A(f"  global_load_dword {vr(CU)}, {vr(vY)}, s[54:55]")
        A("  s_mov_b64 exec, -1")
        A("L_nopf:")
    A(f"  buffer_load_dword {vr(OLD)}, off, s[56:59], s62 {xpol}")
    if touch == 1:
        A(f"  v_mov_b32 {vr(vY)}, 0")
        A(f"  global_load_dword {vr(CU)}, {vr(vY)}, s[26:27]")
    A(f"  v_lshlrev_b32 {vr(vX)}, 4, {vr(vX)}")
    for i in range(4):
        A(f"  v_mov_b32 {vr(W+i)}, -1")
    A(f"  s_mul_i32 s{sRec}, s2, {8*REC}")
    A(f"  s_add_u32 s54, s{sRec}, 1024")
    A(f"  buffer_store_dwordx4 {vr(W,4)}, {vr(vX)}, s[56:59], s{sRec} offen {xpol}")
    for i in range(4):
        A(f"  buffer_store_dwordx4 {vr(W,4)}, {vr(vX)}, s[56:59], s54 offen offset:{1024*i} {xpol}")
    A("  s_barrier")
    if warm:
        A("  s_setprio 0")
        A("  s_mov_b64 exec, 0")
        A("  s_branch L_warm")
        A("L_walked:")
        A("  s_mov_b64 exec, -1")
        A("  s_setprio 3")
    A("  s_waitcnt vmcnt(0)")
    if force:
        A(f"  s_cmp_eq_u32 s2, {force}")
        A("  s_cbranch_scc1 L_end")
    A(f"  v_add_u32 {vr(OLD)}, 1, {vr(OLD)}")
    A("  s_mov_b64 exec, 1")
    A(f"  buffer_store_dword {vr(OLD)}, off, s[56:59], s62 {xpol}")
    A("  s_mov_b64 exec, -1")
    A("  s_cmp_lg_u32 s2, 0")
    A("  s_cbranch_scc1 L_end")
    A(f"  s_mov_b32 s{sT}, {polls}")
    A("  s_waitcnt vmcnt(0)")
    A("L_watch:")
    A(f"  buffer_load_dwordx4 {vr(CU,4)}, {vr(vMn)}, s[56:59], s63 offen {xpol}")
    A(f"  s_mov_b64 s[{sBad}:{sBad+1}], 0")
    A("  s_waitcnt vmcnt(0)")
    for i in range(4):
        A(f"  v_cmp_eq_u32 vcc, {vr(SN+i)}, {vr(CU+i)}")
        A(f"  s_or_b64 s[{sBad}:{sBad+1}], s[{sBad}:{sBad+1}], vcc")
    A("  s_cbranch_scc0 L_goahead")
    A(f"  s_mov_b64 exec, s[{sBad}:{sBad+1}]")
    A(f"  s_sub_u32 s{sT}, s{sT}, 1")
    A(f"  s_cmp_lg_u32 s{sT}, 0")
    A("  s_cbranch_scc1 L_watch")
    A("  s_endpgm")
    A("L_goahead:")
    A("  s_mov_b64 exec, 1")
    A(f"  v_mov_b32 {vr(vX)}, 0")
    A(f"  v_mov_b32 {vr(vY)}, 1")
    A(f"  global_store_dword {vr(vX)}, {vr(vY)}, s[28:29] offset:{OKOFF} {xpol}")
    if stamps:
        A("  s_waitcnt vmcnt(0)")
        A("  s_memrealtime  s[78:79]")
        A("  s_waitcnt lgkmcnt(0)")
        A("  s_sub_u32 s78, s78, s76")
        A(f"  v_mov_b32 {vr(vY)}, s78")
        A(f"  global_store_dword {vr(vX)}, {vr(vY)}, s[28:29] offset:{OKOFF-4}")
        A(f"  v_mov_b32 {vr(vY)}, s{sT}")
        A(f"  global_store_dword {vr(vX)}, {vr(vY)}, s[28:29] offset:{OKOFF-8}")
    A("  s_endpgm")
    A('.section .rodata,"a"')
    A(".p2align 6")
    A(f".amdhsa_kernel {kname}")
    A(f"  .amdhsa_next_free_vgpr {NV}")
    A(f"  .amdhsa_next_free_sgpr {96 if (stamps or padto) else 74}")
    A(f"  .amdhsa_accum_offset {(NV+3)//4*4}")
    A("  .amdhsa_group_segment_fixed_size 0")
    A("  .amdhsa_kernarg_size 112")
    A("  .amdhsa_user_sgpr_count 2")
    A("  .amdhsa_user_sgpr_kernarg_segment_ptr 1")
    A("  .amdhsa_system_sgpr_workgroup_id_x 1")
    A("  .amdhsa_float_denorm_mode_32 3")
    A(".end_amdhsa_kernel")
    return "\n".join(L) + "\n"

if __name__ == "__main__":
    out = sys.argv[1]
    kw = dict(a.split("=", 1) for a in sys.argv[2:])
    for k in list(kw):
        if kw[k] in ("True", "False"):
            kw[k] = kw[k] == "True"
    open(out, "w").write(gen(**kw))
```

```python
import sys, struct, math

NAME = "standalone__kv_cache_quant_pre_rope_vs_post_rope__sampling"
HEADER = open("cdna_kernels/%s.s.ref" % NAME).read().split("; Override launch")[0]

def f32(x):
    return "0x%08x" % struct.unpack("<I", struct.pack("<f", x))[0]

class Regs:
    def __init__(self, start):
        self.n = start
    def alloc(self, cnt, align=1):
        self.n = (self.n + align - 1) // align * align
        r = self.n
        self.n += cnt
        return r

def vr(a, n=1):
    return f"v{a}" if n == 1 else f"v[{a}:{a+n-1}]"

DOC = """\
;
;   its arrival slot; wave 4 of workgroup 0 sets the last word of d_debug (go-ahead) once every slot differs from
;   go-ahead a counter in d_debug picks the last of the four instead."""

def gen(kvpol="nt", cspol="", stamps=False, padto=0, xpol="sc1", force=0, polls=24, warm=1, win=6, win2=0, wint=0,
        dwg=-1, dus=0, n1=8, pipe=1, warmv=1, nopen=1, v0=0, win1=-1):
    padto, force, polls, warm, win, win2, wint = map(int, (padto, force, polls, warm, win, win2, wint))
    dwg, dus, n1, pipe, warmv, nopen = int(dwg), float(dus), int(n1), int(pipe), int(warmv), int(nopen)
    v0, win1 = int(v0), int(win1)
    NW, NWG, NT = 4, 256, 16
    ROW = 272
    WREG = 16 * ROW
    SCK = NW * WREG
    SCV = SCK + 1024 * 8 + 512
    QB = SCV + 1024 * 8 + 1024
    SB = QB + 8 * ROW
    LDS = SB + NW * 8192 + 1024
    OROW = 528
    MLOFF = 8 * OROW
    REC = 640
    SLOTK, SLOTSTRIDE = 3, 4352
    SLOTS = NWG * 8 * REC
    WSUSE = SLOTS + (NWG >> SLOTK) * SLOTSTRIDE
    OKOFF = 252
    kname = NAME + "_kernel"
    L = []
    A = L.append
    C = lambda t: A("  ; " + t)
    A(HEADER.rstrip("\n"))
    A(f"; @launch grid=({NWG},1,1) block=({NW*64+64},1,1) lds={LDS}")
    A(DOC)
    A('.amdgcn_target "amdgcn-amd-amdhsa--gfx950"')
    A(".text")
    A(f".globl {kname}")
    A(".p2align 8")
    A(f".type {kname},@function")
    A(f"{kname}:")

    R = Regs(1)
    vT = 0
    vC, vG = R.alloc(1), R.alloc(1)
    vKo, vCo, vLw, vLr, vSc = (R.alloc(1) for _ in range(5))
    vM = R.alloc(2, 2)
    vL = vM + 1
    vAl = R.alloc(2, 2)
    vMn, vX, vY, vRa, vRb, vEw, vEm, vEr, vEs, vSa, vQa = (R.alloc(1) for _ in range(11))
    V = R.alloc(64, 4)
    shared = R.alloc(0, 4)
    K = R.alloc(32, 4)
    CS = R.alloc(16, 4)
    CH = R.alloc(4, 4)
    SK = R.alloc(8, 4)
    Q = R.alloc(16, 4)
    F = R.alloc(8, 4)
    T = R.alloc(8, 4)
    W = R.alloc(4, 4)
    AF = R.alloc(16, 4)
    S = R.alloc(4, 4)
    NV = R.n
    R.n = shared
    O = R.alloc(32, 4)
    VA = R.alloc(32, 4)
    G = R.alloc(16, 4)
    SV = R.alloc(16, 4)
    SP = R.alloc(8, 4)
    P = R.alloc(4, 4)
    assert R.n <= NV <= 256
    PML, PO, E, U, ML, OP = V, V + 8, V + 20, V + 24, V + 40, V + 48
    sK, sC, sT, sW, sK2, sLim = 48, 49, 50, 3, 70, 73
    sSelLo, sSelHi, sScale, sHead, sHb, sOff, sCp = 51, 52, 53, 60, 61, 62, 63
    sRec, sBad, sOut, sOk = 64, 68, 71, 72
    nstamp = [0]
    def stamp():
        if stamps:
            A(f"  s_memrealtime s[{76+2*nstamp[0]}:{77+2*nstamp[0]}]")
            nstamp[0] += 1
    hopn = [0]
    def hop(lab):
        if warm:
            A(f"  s_cbranch_execz {lab}")
    def guarded(lines):
        hopn[0] += 1
        hop(f"L_hop{hopn[0]}")
        L.extend(lines)
        if warm:
            A(f"L_hop{hopn[0]}:")

    def ld_k(j):
        return [f"  buffer_load_dwordx4 {vr(K+8*j+4*h,4)}, {vr(vKo)}, s[32:35], s{sK} offen offset:{512*j+256*h} {kvpol}" for h in range(2)]
    def ld_cs(j):
        return [f"  buffer_load_dwordx2 {vr(CS+4*j+2*t,2)}, {vr(vCo)}, s[{40+4*t}:{43+4*t}], s{sC} offen offset:{256*j} {cspol}" for t in range(2)]
    def ksite(j):
        k, t = ld_k(j), ld_cs(j)
        return [k[0], t[0], k[1], t[1]]
    def ld_v(u, q, so):
        jp, h = q >> 1, q & 1
        return [f"  buffer_load_dwordx4 {vr(V+32*u+8*j+4*h,4)}, {vr(vKo)}, s[36:39], s{so} offen offset:{512*j+256*h} {kvpol}"
                for j in (2*jp, 2*jp+1)]
    def step(dst):
        A(f"  s_add_u32 s{sOff}, s{sOff}, 0x20000")
        A(f"  s_and_b32 s{sOff}, s{sOff}, 0x1fffff")
        A(f"  s_add_u32 s{dst}, s{sOff}, s{sHb}")
    def advance_k():
        A(f"  s_mov_b32 s{sCp}, s{sC}")
        step(sK)
        A(f"  s_lshr_b32 s{sC}, s{sOff}, 1")
    def read_sk():
        for i in range(2):
            A(f"  ds_read_b128 {vr(SK+4*i,4)}, {vr(vSc)} offset:{SCK+16*i}")
        A(f"  v_add_u32 {vr(vSc)}, 512, {vr(vSc)}")
    def read_q():
        for i in range(4):
            A(f"  ds_read_b128 {vr(Q+4*i,4)}, {vr(vQa)} offset:{QB+16*i}")
    def dequant(dst, cnt, sc):
        for i in range(cnt // 2):
            A(f"  v_pk_fma_f32 {vr(dst+2*i,2)}, {vr(dst+2*i,2)}, {vr(sc,2)}, {vr(sc,2)} op_sel:[0,0,1] op_sel_hi:[1,0,1]")

    C("the first K tile is requested from the first 256 bytes of code")
    A("  s_load_dwordx16 s[4:19], s[0:1], 0")
    A("  s_load_dwordx8 s[20:27], s[0:1], 64")
    A("  s_load_dwordx4 s[28:31], s[0:1], 96")
    if padto:
        A("  s_memrealtime  s[74:75]")
    stamp()
    A(f"  s_cmpk_ge_u32 s2, {NWG}")
    A("  s_cbranch_scc1 L_end")
    if dwg >= 0:
        A(f"  s_cmp_lg_u32 s2, {dwg}")
        A("  s_cbranch_scc1 L_nodelay")
        A("  s_memrealtime  s[88:89]")
        A("L_delay:")
        A("  s_memrealtime  s[90:91]")
        A("  s_waitcnt lgkmcnt(0)")
        A("  s_sub_u32 s90, s90, s88")
        A(f"  s_cmp_lt_u32 s90, {int(dus*100)}")
        A("  s_cbranch_scc1 L_delay")
        A("L_nodelay:")
    A(f"  v_readfirstlane_b32 s{sW}, v0")
    A(f"  v_and_b32 {vr(vC)}, 15, v0")
    A(f"  v_bfe_u32 {vr(vG)}, v0, 4, 2")
    A(f"  v_lshlrev_b32 {vr(vKo)}, 4, {vr(vC)}")
    A(f"  v_lshl_add_u32 {vr(vKo)}, {vr(vG)}, 11, {vr(vKo)}")
    A(f"  s_lshr_b32 s{sW}, s{sW}, 6")
    A(f"  s_cmp_eq_u32 s{sW}, {NW}")
    A("  s_cbranch_scc1 L_helper")
    A("  s_andn2_b32 s54, s2, 15")
    A("  s_and_b32 s55, s2, 3")
    A("  s_lshl2_add_u32 s54, s55, s54")
    A(f"  s_add_u32 s54, s54, s{sW}")
    A(f"  s_lshl_b32 s{sOff}, s54, 13")
    A(f"  s_lshr_b32 s{sHead}, s2, 2")
    A(f"  s_lshl_b32 s{sHb}, s{sHead}, 21")
    A(f"  s_add_u32 s{sK}, s{sOff}, s{sHb}")
    A("  s_lshl_b32 s34, 1, 27")
    A("  s_mov_b32 s35, 0x20000")
    A("  s_waitcnt lgkmcnt(0)")
    A("  s_mov_b64 s[32:33], s[6:7]")
    nk0 = 4 if v0 else 2
    for j in range(nk0):
        L.extend(ld_k(j))
    stamp()
    C("thread t: four keys of the scale arrays, one dword pair of the q rows, record of query t >> 5")
    A(f"  s_lshr_b32 s54, s2, 4")
    A(f"  v_lshrrev_b32 {vr(vX)}, 4, {vr(vT)}")
    A(f"  v_add_u32 {vr(vX)}, s54, {vr(vX)}")
    A(f"  v_and_b32 {vr(vX)}, 15, {vr(vX)}")
    A(f"  v_lshlrev_b32 {vr(vX)}, 9, {vr(vX)}")
    A(f"  v_lshl_add_u32 {vr(vX)}, {vr(vC)}, 3, {vr(vX)}")
    A(f"  s_lshl_b32 s54, s{sHead}, 13")
    A("  s_lshl_b32 s55, s55, 7")
    A("  s_add_u32 s54, s54, s55")
    A(f"  v_add_u32 {vr(vX)}, s54, {vr(vX)}")
    A(f"  v_lshrrev_b32 {vr(vEs)}, 5, {vr(vT)}")
    A(f"  v_and_b32 {vr(vMn)}, 31, {vr(vT)}")
    A(f"  v_lshlrev_b32 {vr(vY)}, 8, {vr(vEs)}")
    A(f"  v_lshl_add_u32 {vr(vY)}, {vr(vMn)}, 2, {vr(vY)}")
    A(f"  s_lshl_b32 s{sOut}, s{sHead}, 11")
    A(f"  s_add_u32 s4, s4, s{sOut}")
    A("  s_addc_u32 s5, s5, 0")
    SR, QR = AF, AF + 8
    for i, p in enumerate((8, 10, 14, 16)):
        A(f"  global_load_dwordx2 {vr(SR+2*i,2)}, {vr(vX)}, s[{p}:{p+1}]")
    for i, p in enumerate((4, 18, 20)):
        for h in range(2):
            A(f"  global_load_dword {vr(QR+2*i+h)}, {vr(vY)}, s[{p}:{p+1}] offset:{128*h}")
    A(f"  v_lshrrev_b32 {vr(vCo)}, 1, {vr(vKo)}")
    A(f"  s_lshr_b32 s{sC}, s{sOff}, 1")
    A("  s_mov_b64 s[40:41], s[22:23]")
    A("  s_lshl_b32 s42, 1, 20")
    A("  s_mov_b32 s43, s35")
    A("  s_mov_b64 s[44:45], s[24:25]")
    A("  s_mov_b64 s[46:47], s[42:43]")
    A("  s_mov_b64 s[36:37], s[12:13]")
    A("  s_mov_b64 s[38:39], s[34:35]")
    setup = []
    B = setup.append
    B(f"  s_mov_b32 s{sSelLo}, 0x05040100")
    B(f"  s_mov_b32 s{sSelHi}, 0x07060302")
    B(f"  s_mov_b32 s{sScale}, {f32(math.log2(math.e) / math.sqrt(128.0))}")
    B("  s_mov_b64 s[56:57], s[30:31]")
    B(f"  s_mov_b32 s58, {SLOTS}")
    B("  s_mov_b32 s59, s35")
    B(f"  s_mul_i32 s{sRec}, s2, {8*REC}")
    for k in range(1, 4):
        B(f"  s_xor_b32 s54, s2, {k}")
        B(f"  s_mul_i32 s{sRec+k}, s54, {8*REC}")
    B(f"  v_mul_u32_u24 {vr(vRb)}, {REC}, {vr(vEs)}")
    B(f"  v_lshl_add_u32 {vr(vRa)}, {vr(vMn)}, 4, {vr(vRb)}")
    B(f"  v_mul_u32_u24 {vr(vEr)}, {OROW}, {vr(vEs)}")
    B(f"  v_lshl_add_u32 {vr(vEr)}, {vr(vMn)}, 4, {vr(vEr)}")
    B(f"  v_mul_u32_u24 {vr(vY)}, {ROW}, {vr(vEs)}")
    B(f"  v_lshlrev_b32 {vr(vEs)}, 3, {vr(vEs)}")
    B(f"  v_and_b32 {vr(vX)}, 30, {vr(vT)}")
    B(f"  v_lshl_add_u32 {vr(vY)}, {vr(vX)}, 3, {vr(vY)}")
    B(f"  v_and_b32 {vr(vX)}, 1, {vr(vT)}")
    B(f"  v_lshl_add_u32 {vr(vY)}, {vr(vX)}, 2, {vr(vY)}")
    B(f"  s_mul_i32 s54, s{sW}, {WREG}")
    B(f"  v_mul_u32_u24 {vr(vLw)}, {4*ROW}, {vr(vG)}")
    B(f"  v_lshl_add_u32 {vr(vLw)}, {vr(vC)}, 4, {vr(vLw)}")
    B(f"  v_add_u32 {vr(vLw)}, s54, {vr(vLw)}")
    B(f"  v_mul_u32_u24 {vr(vLr)}, {ROW}, {vr(vC)}")
    B(f"  v_lshl_add_u32 {vr(vLr)}, {vr(vG)}, 6, {vr(vLr)}")
    B(f"  v_add_u32 {vr(vLr)}, s54, {vr(vLr)}")
    B(f"  v_and_b32 {vr(vMn)}, 7, {vr(vC)}")
    B(f"  v_lshl_add_u32 {vr(vEm)}, {vr(vMn)}, 3, s54")
    B(f"  v_mul_u32_u24 {vr(vEw)}, {OROW}, {vr(vMn)}")
    B(f"  v_lshl_add_u32 {vr(vEw)}, {vr(vG)}, 6, {vr(vEw)}")
    B(f"  v_lshrrev_b32 {vr(vX)}, 3, {vr(vC)}")
    B(f"  v_lshl_add_u32 {vr(vEw)}, {vr(vX)}, 8, {vr(vEw)}")
    B(f"  v_add_u32 {vr(vEw)}, s54, {vr(vEw)}")
    B(f"  v_mul_u32_u24 {vr(vQa)}, {ROW}, {vr(vMn)}")
    B(f"  v_lshl_add_u32 {vr(vQa)}, {vr(vG)}, 6, {vr(vQa)}")
    B(f"  s_lshl_b32 s54, s{sW}, 13")
    B(f"  v_lshl_add_u32 {vr(vSa)}, {vr(vMn)}, 4, s54")
    B(f"  v_lshl_add_u32 {vr(vSa)}, {vr(vG)}, 7, {vr(vSa)}")
    B(f"  s_lshl_b32 s54, s{sW}, 7")
    B(f"  v_lshl_add_u32 {vr(vSc)}, {vr(vG)}, 5, s54")
    B(f"  v_lshlrev_b32 {vr(vX)}, 5, {vr(vT)}")
    B(f"  v_mov_b32 {vr(vM)}, {f32(-3.0e38)}")
    B(f"  s_mov_b32 s{sT}, {NT}")
    B(f"  s_mov_b32 s{sLim}, 1")
    B("  s_mov_b64 vcc, 0")
    if v0:
        rest = [t for j in range(4) for t in ld_cs(j)] + [t for q in range(4) for t in ld_v(0, q, sK)]
    else:
        rest = ld_cs(0) + ld_cs(1) + ksite(2) + ksite(3)
    ra, rb, rc = rest[:n1], rest[n1:n1+4], rest[n1+4:]
    per = -(-len(setup) // len(ra))
    for i, t in enumerate(ra):
        A(t)
        L.extend(setup[per*i:per*i+per])
    stamp()
    C("scale records, four keys per thread")
    A(f"  s_waitcnt vmcnt({len(ra)+6})")
    stamp()
    for a in range(2):
        for e in range(4):
            for i in range(2):
                src = SR + 4*a + 2*i + e // 2
                if e % 2 == 0:
                    A(f"  v_lshlrev_b32 {vr(F+8*a+2*e+i)}, 16, {vr(src)}")
                else:
                    A(f"  v_and_b32 {vr(F+8*a+2*e+i)}, 0xffff0000, {vr(src)}")
            A(f"  v_mul_f32 {vr(F+8*a+2*e+1)}, -{vr(F+8*a+2*e)}, {vr(F+8*a+2*e+1)}")
            if e % 2:
                A(f"  ds_write_b128 {vr(vX)}, {vr(F+8*a+2*e-2,4)} offset:{(SCK, SCV)[a]+8*(e-1)}")
                L.extend(rb[2*a+e//2:2*a+e//2+1])
    C("rotated queries")
    A(f"  s_waitcnt vmcnt({len(ra)+len(rb)})")
    for e, sel in enumerate((sSelLo, sSelHi)):
        A(f"  v_perm_b32 {vr(W+e)}, {vr(QR+1)}, {vr(QR)}, s{sel}")
        A(f"  v_perm_b32 {vr(S+e)}, {vr(QR+4)}, {vr(QR+2)}, s{sel}")
        A(f"  v_perm_b32 {vr(S+2+e)}, {vr(QR+3)}, {vr(QR+5)}, s{sel}")
    for e in range(2):
        A(f"  v_dot2_f32_bf16 {vr(S+e)}, {vr(W+e)}, {vr(S+e)}, 0 neg_hi:[0,1,0]")
    for e in range(2):
        A(f"  v_dot2_f32_bf16 {vr(S+2+e)}, {vr(W+e)}, {vr(S+2+e)}, 0")
    A("  s_nop 2")
    A(f"  v_cvt_pk_bf16_f32 {vr(W)}, {vr(S)}, {vr(S+1)}")
    A(f"  v_cvt_pk_bf16_f32 {vr(W+1)}, {vr(S+2)}, {vr(S+3)}")
    A(f"  ds_write_b32 {vr(vY)}, {vr(W)} offset:{QB}")
    A(f"  ds_write_b32 {vr(vY)}, {vr(W+1)} offset:{QB+8}")
    A("  s_waitcnt lgkmcnt(0)")
    A("  s_barrier")
    read_sk()
    read_q()
    L.extend(rc)
    advance_k()
    if v0:
        A("  s_waitcnt vmcnt(8)")
    else:
        C("the K rows 0 and 1 went out first, so row 0 has two younger requests fewer than in the loop")
        A("  s_waitcnt vmcnt(10)")
    stamp()

    def k_tile(last):
        for j in range(4):
            kj, cj = K + 8*j, CS + 4*j
            after = 4*(3-j) + (2*j if last and v0 else 4*j)
            A(f"  s_waitcnt vmcnt({after})" + (" lgkmcnt(0)" if j == 0 else ""))
            if last and j == 0:
                A("L_walk:")
            for i in range(8):
                A(f"  v_cvt_f32_i32 {vr(F+i)}, {vr(kj+i)}")
            for r in range(4):
                A(f"  v_perm_b32 {vr(T+r)}, {vr(cj+2+r//2)}, {vr(cj+r//2)}, s{(sSelLo, sSelHi)[r%2]}")
            if not last:
                A(f"  s_cbranch_vccnz L_both{j}")
            for r in range(4):
                A(f"  v_perm_b32 {vr(T+4+r)}, {vr(cj+r//2)}, {vr(cj+2+r//2)}, s{(sSelLo, sSelHi)[r%2]}")
            if last:
                vl = ld_v(1, j, sK) if v0 else ld_v(j >> 1, 2*(j & 1), (sK2, sK)[j >> 1]) + ld_v(j >> 1, 2*(j & 1) + 1, (sK2, sK)[j >> 1])
                guarded([x for t in vl for x in ([f"  s_waitcnt vmcnt({wint-1})"] if wint else []) + [t]])
            else:
                A(f"L_back{j}:")
                L.extend(ksite(j))
            dequant(F, 8, SK+2*j)
            for r in range(4):
                A(f"  v_cvt_pk_bf16_f32 {vr(F+r)}, {vr(F+r)}, {vr(F+4+r)}")
            for r in range(4):
                A(f"  v_dot2_f32_bf16 {vr(T+r)}, {vr(F+r)}, {vr(T+r)}, 0 neg_hi:[0,1,0]")
            for r in range(4):
                A(f"  v_dot2_f32_bf16 {vr(T+4+r)}, {vr(F+r)}, {vr(T+4+r)}, 0")
            for r in range(4):
                A(f"  v_cvt_pk_bf16_f32 {vr(W+r)}, {vr(T+2*r)}, {vr(T+2*r+1)}")
            A(f"  ds_write_b128 {vr(vLw)}, {vr(W,4)} offset:{ROW*j}")
        for i in range(4):
            A(f"  ds_read_b128 {vr(AF+4*i,4)}, {vr(vLr)} offset:{16*i}")
        if not last:
            read_sk()
            advance_k()
            A(f"  s_sub_u32 s{sT}, s{sT}, 1")
        for i in range(4):
            A(f"  s_waitcnt lgkmcnt({3 - i + (0 if last else 2)})")
            c = "0" if i == 0 else vr(S, 4)
            A(f"  v_mfma_f32_16x16x32_bf16 {vr(S,4)}, {vr(AF+4*i,4)}, {vr(Q+4*i,4)}, {c}")
        A("  s_nop 7")
        A(f"  ds_write_b128 {vr(vSa)}, {vr(S,4)} offset:{SB}")
        A(f"  v_max3_f32 {vr(vM)}, {vr(vM)}, {vr(S)}, {vr(S+1)}")
        A(f"  v_max3_f32 {vr(vM)}, {vr(vM)}, {vr(S+2)}, {vr(S+3)}")
        A(f"  v_add_u32 {vr(vSa)}, 512, {vr(vSa)}")

    C("pass 1")
    A("L_kloop:")
    k_tile(False)
    if stamps:
        A(f"  s_cmp_lg_u32 s{sT}, {NT-1}")
        A("  s_cbranch_scc1 L_nost")
        stamp()
        A("L_nost:")
    A(f"  s_cmp_gt_u32 s{sT}, s{sLim}")
    A("  s_cbranch_scc1 L_kloop")
    A("  s_cbranch_vccnz L_kgeneral")
    C("sixteen steps wrapped the offset back to tile 0; the last K tile requests the first V tiles")
    A(f"  s_mov_b32 s{sK2}, s{sK}")
    step(sK)
    k_tile(True)
    A("L_kdone:")
    if stamps:
        A("  s_memrealtime  s[94:95]")
    C("row maximum over the wave's keys, in log2 units")
    A(f"  v_mov_b32 {vr(vY)}, {vr(vM)}")
    A(f"  v_subrev_u32 {vr(vSa)}, {16*512}, {vr(vSa)}")
    A(f"  v_subrev_u32 {vr(vSc)}, {16*512}, {vr(vSc)}")
    A(f"  v_permlane32_swap_b32 {vr(vM)}, {vr(vY)}")
    A(f"  v_max_f32 {vr(vM)}, {vr(vM)}, {vr(vY)}")
    A(f"  v_mov_b32 {vr(vY)}, {vr(vM)}")
    def read_pair():
        for u in range(2):
            A(f"  ds_read_b128 {vr(SP+4*u,4)}, {vr(vSa)} offset:{SB+512*u}")
        for u in range(2):
            for i in range(2):
                A(f"  ds_read_b128 {vr(SV+8*u+4*i,4)}, {vr(vSc)} offset:{SCV+512*u+16*i}")
        A(f"  v_add_u32 {vr(vSa)}, 1024, {vr(vSa)}")
        A(f"  v_add_u32 {vr(vSc)}, 1024, {vr(vSc)}")
    read_pair()
    A(f"  v_permlane16_swap_b32 {vr(vM)}, {vr(vY)}")
    A(f"  v_max_f32 {vr(vM)}, {vr(vM)}, {vr(vY)}")
    A(f"  v_mul_f32 {vr(vM)}, s{sScale}, {vr(vM)}")
    for i in range(32):
        A(f"  v_mov_b32 {vr(O+i)}, 0")
    A(f"  v_mov_b32 {vr(vL)}, 0")
    A(f"  s_mov_b32 s{sT}, {7 - nopen - (1 if win1 >= 0 else 0)}")
    if not warmv:
        hop("L_vopen")

    def v_pair(kind):
        last = kind == "last"
        w = {"loop": win, "open": win2, "open0": win2, "first": win1, "last": 0}[kind]
        if not last:
            step(sK)
            step(sK2)
        order = [(u, q) for u in range(2) for q in range(4)]
        for n, (u, q) in enumerate(order):
            jp, h = q >> 1, q & 1
            if last and n == 7:
                C("the low columns do not depend on the last quarter")
                A("  s_nop 1")
                for i in range(4):
                    A(f"  v_mfma_f32_16x16x32_bf16 {vr(O+4*i,4)}, {vr(VA+4*i,4)}, {vr(P,4)}, {vr(O+4*i,4)}")
            A(f"  s_waitcnt vmcnt({2*(7-n) if last else 14})" + (" lgkmcnt(0)" if n == 0 else ""))
            if kind == "open" and n == 0:
                guarded([f"  s_load_dword s{sOk}, s[28:29], {OKOFF}"])
            for e in range(2):
                for i in range(4):
                    A(f"  v_cvt_f32_i32 {vr(G+4*e+i)}, {vr(V+32*u+8*(2*jp+e)+4*h+i)}")
            if not last:
                lines = [x for t in ld_v(u, q, (sK, sK2)[u]) for x in ([f"  s_waitcnt vmcnt({w-1})"] if w else []) + [t]]
                if kind == "loop" and not warmv:
                    L.extend(lines)
                else:
                    guarded(lines)
            for e in range(2):
                dequant(G+4*e, 4, SV+8*u+2*(2*jp+e))
            for r in range(4):
                A(f"  v_cvt_pk_bf16_f32 {vr(VA+4*(4*h+r)+2*u+jp)}, {vr(G+r)}, {vr(G+4+r)}")
            if n == 0:
                for i in range(8):
                    A(f"  v_fma_f32 {vr(SP+i)}, {vr(SP+i)}, s{sScale}, -{vr(vM)}")
                for i in range(8):
                    A(f"  v_exp_f32 {vr(SP+i)}, {vr(SP+i)}")
            if n == 1:
                for i in range(4):
                    A(f"  v_cvt_pk_bf16_f32 {vr(P+i)}, {vr(SP+2*i)}, {vr(SP+2*i+1)}")
                for i in range(2):
                    A(f"  v_pk_add_f32 {vr(SP+4*i,2)}, {vr(SP+4*i,2)}, {vr(SP+4*i+2,2)}")
                A(f"  v_pk_add_f32 {vr(SP,2)}, {vr(SP,2)}, {vr(SP+4,2)}")
                A(f"  v_add_f32 {vr(vL)}, {vr(vL)}, {vr(SP)}")
                A(f"  v_add_f32 {vr(vL)}, {vr(vL)}, {vr(SP+1)}")
            if n == 2 and last:
                C("row sums over the four lane groups; (m, l) of this wave")
                A(f"  v_mov_b32 {vr(vY)}, {vr(vL)}")
                A(f"  v_lshlrev_b32 {vr(vX)}, 3, {vr(vT)}")
                A(f"  v_cmp_lt_u32 s[{sBad}:{sBad+1}], 7, {vr(vC)}")
                A(f"  v_permlane32_swap_b32 {vr(vL)}, {vr(vY)}")
                A(f"  v_add_f32 {vr(vL)}, {vr(vL)}, {vr(vY)}")
                A(f"  v_mov_b32 {vr(vY)}, {vr(vL)}")
                A("  s_nop 1")
                A(f"  v_permlane16_swap_b32 {vr(vL)}, {vr(vY)}")
                A(f"  v_add_f32 {vr(vL)}, {vr(vL)}, {vr(vY)}")
                A(f"  ds_write_b64 {vr(vEm)}, {vr(vM,2)} offset:{MLOFF}")
        if last:
            A("  s_nop 1")
        else:
            read_pair()
        for i in range(4 if last else 0, 8):
            A(f"  v_mfma_f32_16x16x32_bf16 {vr(O+4*i,4)}, {vr(VA+4*i,4)}, {vr(P,4)}, {vr(O+4*i,4)}")

    C("pass 2")
    if win1 >= 0:
        v_pair("first")
    A("L_vloop:")
    v_pair("loop")
    A(f"  s_sub_u32 s{sT}, s{sT}, 1")
    A(f"  s_cmp_lg_u32 s{sT}, 0")
    if warmv:
        hop("L_vopen")
    A("  s_cbranch_scc1 L_vloop")
    A("L_vopen:")
    for i in range(nopen - 1):
        v_pair("open0")
    v_pair("open")
    A("  s_waitcnt lgkmcnt(0)")
    A(f"  s_or_b32 s54, s{sOk}, vcc_lo")
    hop("L_vlast")
    A("  s_cbranch_scc0 L_restart")
    A("L_vlast:")
    A("  s_mov_b64 s[36:37], s[26:27]")
    A(f"  s_mov_b32 s38, {64*8*128*2}")
    v_pair("last")
    stamp()

    C("wave partial -> LDS; lanes with c >= 8 carry a copy of the columns and store the upper half of each row")
    A("  s_nop 4")
    for rho in range(4):
        for r in range(4):
            A(f"  v_cndmask_b32 {vr(G+4*rho+r)}, {vr(O+4*r+rho)}, {vr(O+16+4*r+rho)}, s[{sBad}:{sBad+1}]")
        A(f"  ds_write_b128 {vr(vEw)}, {vr(G+4*rho,4)} offset:{16*rho}")
    def ld_partners():
        for k in range(1, 4):
            A(f"  buffer_load_dwordx2 {vr(PML+2*(k-1),2)}, {vr(vRb)}, s[56:59], s{sRec+k} offen offset:512 {xpol}")
            A(f"  buffer_load_dwordx4 {vr(PO+4*(k-1),4)}, {vr(vRa)}, s[56:59], s{sRec+k} offen {xpol}")
    def unfilled():
        regs = [PML+i for i in range(6)] + [PO+i for i in range(12)]
        for i in range(6):
            A(f"  v_max3_u32 {vr(U+i)}, {vr(regs[3*i])}, {vr(regs[3*i+1])}, {vr(regs[3*i+2])}")
        A(f"  v_max3_u32 {vr(U)}, {vr(U)}, {vr(U+1)}, {vr(U+2)}")
        A(f"  v_max3_u32 {vr(U+3)}, {vr(U+3)}, {vr(U+4)}, {vr(U+5)}")
        A(f"  v_max_u32 {vr(U)}, {vr(U)}, {vr(U+3)}")
        A(f"  v_cmp_eq_u32 vcc, -1, {vr(U)}")
    hop("L_hopa")
    A("  s_waitcnt lgkmcnt(0)")
    A("  s_barrier")
    ld_partners()
    A("L_hopa:")
    C("thread t merges the four waves for query t >> 5, columns 4 * (t & 31) .. + 3")
    for w in range(4):
        A(f"  ds_read_b64 {vr(ML+2*w,2)}, {vr(vEs)} offset:{MLOFF + w*WREG}")
    for w in range(4):
        A(f"  ds_read_b128 {vr(OP+4*w,4)}, {vr(vEr)} offset:{w*WREG}")
    A("  s_waitcnt lgkmcnt(4)")
    A(f"  v_max3_f32 {vr(vM)}, {vr(ML)}, {vr(ML+2)}, {vr(ML+4)}")
    A(f"  v_max_f32 {vr(vM)}, {vr(vM)}, {vr(ML+6)}")
    for w in range(4):
        A(f"  v_sub_f32 {vr(ML+2*w)}, {vr(ML+2*w)}, {vr(vM)}")
    for w in range(4):
        A(f"  v_exp_f32 {vr(ML+2*w)}, {vr(ML+2*w)}")
    A(f"  v_mul_f32 {vr(vL)}, {vr(ML)}, {vr(ML+1)}")
    for w in range(1, 4):
        A(f"  v_fma_f32 {vr(vL)}, {vr(ML+2*w)}, {vr(ML+2*w+1)}, {vr(vL)}")
    A("  s_waitcnt lgkmcnt(0)")
    for r in range(2):
        A(f"  v_pk_mul_f32 {vr(E+2*r,2)}, {vr(OP+2*r,2)}, {vr(ML,2)} op_sel_hi:[1,0]")
    for w in range(1, 4):
        for r in range(2):
            A(f"  v_pk_fma_f32 {vr(E+2*r,2)}, {vr(OP+4*w+2*r,2)}, {vr(ML+2*w,2)}, {vr(E+2*r,2)} op_sel_hi:[1,0,1]")
    C("-1 marks an unwritten word, so no stored word may be -1")
    for x in (vM, vL, E, E+1, E+2, E+3):
        A(f"  v_min_u32 {vr(x)}, -2, {vr(x)}")
    hop("L_hopb")
    A(f"  buffer_store_dwordx4 {vr(E,4)}, {vr(vRa)}, s[56:59], s{sRec} offen {xpol}")
    A("  s_mov_b32 exec_lo, 1")
    A("  s_mov_b32 exec_hi, 1")
    A(f"  buffer_store_dwordx2 {vr(vM,2)}, {vr(vRb)}, s[56:59], s{sRec} offen offset:512 {xpol}")
    A("  s_mov_b64 exec, -1")
    stamp()
    A(f"  s_cmp_eq_u32 s{sOk}, 0")
    A("  s_cbranch_scc1 L_slow")
    A("  s_waitcnt vmcnt(2)")
    A("L_hopb:")
    unfilled()
    if stamps:
        A("  s_mov_b32 s93, 1")
    hop("L_final")
    A("  s_cbranch_vccnz L_late")
    A("L_final:")
    C("the sums pair splits {0,1} and {2,3} with separately rounded products: the result does not depend on the writer")
    ms = [vM, PML, PML+2, PML+4]
    os_ = [E, PO, PO+4, PO+8]
    A(f"  v_max3_f32 {vr(vMn)}, {vr(ms[0])}, {vr(ms[1])}, {vr(ms[2])}")
    A(f"  v_max_f32 {vr(vMn)}, {vr(vMn)}, {vr(ms[3])}")
    for k in range(4):
        A(f"  v_sub_f32 {vr(U+2*k)}, {vr(ms[k])}, {vr(vMn)}")
    for k in range(4):
        A(f"  v_exp_f32 {vr(U+2*k)}, {vr(U+2*k)}")
    for k in range(4):
        A(f"  v_mul_f32 {vr(U+2*k+1)}, {vr(U+2*k)}, {vr(ms[k]+1)}")
    A(f"  v_add_f32 {vr(U+1)}, {vr(U+1)}, {vr(U+3)}")
    A(f"  v_add_f32 {vr(U+5)}, {vr(U+5)}, {vr(U+7)}")
    A(f"  v_add_f32 {vr(U+1)}, {vr(U+1)}, {vr(U+5)}")
    A(f"  v_rcp_f32 {vr(vAl)}, {vr(U+1)}")
    for k in range(4):
        for r in range(2):
            A(f"  v_pk_mul_f32 {vr(G+4*k+2*r,2)}, {vr(os_[k]+2*r,2)}, {vr(U+2*k,2)} op_sel_hi:[1,0]")
    for a, b in ((0, 1), (2, 3), (0, 2)):
        for r in range(2):
            A(f"  v_pk_add_f32 {vr(G+4*a+2*r,2)}, {vr(G+4*a+2*r,2)}, {vr(G+4*b+2*r,2)}")
    for r in range(2):
        A(f"  v_pk_mul_f32 {vr(G+2*r,2)}, {vr(G+2*r,2)}, {vr(vAl,2)} op_sel_hi:[1,0]")
    A(f"  v_cvt_pk_bf16_f32 {vr(P)}, {vr(G)}, {vr(G+1)}")
    A(f"  v_cvt_pk_bf16_f32 {vr(P+1)}, {vr(G+2)}, {vr(G+3)}")
    hop("L_walked")
    A(f"  buffer_store_dwordx2 {vr(P,2)}, {vr(vX)}, s[36:39], s{sOut} offen")
    A("L_done:")
    if stamps:
        A("  s_waitcnt vmcnt(0)")
        A(f"  s_mov_b32 s70, s93")
        stamp()
        A("  s_waitcnt lgkmcnt(0)")
        A(f"  s_lshl_b32 s54, s2, 2")
        A(f"  s_add_u32 s54, s54, s{sW}")
        A(f"  s_lshl_b32 s54, s54, 6")
        A(f"  s_add_u32 s54, s54, {16<<20}")
        A(f"  s_mov_b32 s58, {32<<20}")
        for i in range(nstamp[0]):
            A(f"  v_mov_b32 {vr(G+i)}, s{76+2*i}")
        A(f"  v_mov_b32 {vr(G+15)}, s70")
        A(f"  v_mov_b32 {vr(G+12)}, s94")
        A("  s_getreg_b32 s70, hwreg(HW_REG_XCC_ID)")
        A(f"  v_mov_b32 {vr(G+14)}, s70")
        A("  s_mov_b64 exec, 1")
        for i in range(4):
            A(f"  buffer_store_dwordx4 {vr(G+4*i,4)}, off, s[56:59], s54 offset:{16*i}")
    if padto:
        A("L_pad:")
        A("  s_memrealtime  s[76:77]")
        A("  s_waitcnt lgkmcnt(0)")
        A("  s_sub_u32 s76, s76, s74")
        A(f"  s_cmp_lt_u32 s76, {padto*100}")
        A("  s_cbranch_scc1 L_pad")
    A("L_end:")
    A("  s_endpgm")
    def leave():
        if stamps:
            A("  s_mov_b32 s93, 0")
        A("  s_branch L_done" if (stamps or padto) else "  s_endpgm")

    C("last look, after the own record was acknowledged")
    A("L_late:")
    A("  s_waitcnt vmcnt(0)")
    A("L_reload:")
    ld_partners()
    A("  s_waitcnt vmcnt(0)")
    unfilled()
    if stamps:
        A("  s_mov_b32 s93, 2")
    A("  s_cbranch_vccz L_final")
    leave()
    C("no go-ahead so far: look again once the own record is acknowledged, else count arrivals in d_debug")
    A("L_slow:")
    A(f"  v_mov_b32 {vr(vY)}, 0")
    A("  s_waitcnt vmcnt(0)")
    A(f"  global_load_dword {vr(U)}, {vr(vY)}, s[28:29] offset:{OKOFF} {xpol}")
    A("  s_waitcnt vmcnt(0)")
    A(f"  v_readfirstlane_b32 s54, {vr(U)}")
    A("  s_nop 3")
    A("  s_cmp_eq_u32 s54, 1")
    A("  s_cbranch_scc1 L_reload")
    A(f"  s_lshl2_add_u32 s54, s{sHead}, s{sW}")
    A("  s_and_b32 s55, s54, 7")
    A("  s_lshl_b32 s55, s55, 2")
    A("  s_lshr_b32 s54, s54, 3")
    A("  s_lshl_b32 s54, s54, 2")
    A(f"  v_mov_b32 {vr(vY)}, s54")
    A("  s_lshl_b32 s54, 1, s55")
    A(f"  v_mov_b32 {vr(U)}, s54")
    A("  s_mov_b64 exec, 1")
    A(f"  global_atomic_add {vr(U)}, {vr(vY)}, {vr(U)}, s[28:29] sc0 sc1")
    A("  s_waitcnt vmcnt(0)")
    A(f"  v_readfirstlane_b32 s54, {vr(U)}")
    A("  s_mov_b64 exec, -1")
    A("  s_nop 3")
    A("  s_lshr_b32 s54, s54, s55")
    A("  s_and_b32 s54, s54, 15")
    A("  s_cmp_eq_u32 s54, 3")
    A("  s_cbranch_scc1 L_reload")
    leave()

    C("general passes: both table halves are read for every key")
    A("L_restart:")
    A("  s_waitcnt vmcnt(0)")
    advance_k()
    for j in range(4):
        L.extend(ksite(j))
    advance_k()
    A(f"  v_subrev_u32 {vr(vSa)}, {16*512}, {vr(vSa)}")
    A(f"  v_subrev_u32 {vr(vSc)}, {16*512}, {vr(vSc)}")
    read_sk()
    read_q()
    A(f"  v_mov_b32 {vr(vM)}, {f32(-3.0e38)}")
    A(f"  s_mov_b32 s{sT}, {NT}")
    A(f"  s_mov_b32 s{sLim}, 0")
    A("  s_mov_b64 vcc, -1")
    A("  s_branch L_kloop")
    for j in range(4):
        A(f"L_both{j}:")
        for t in range(2):
            A(f"  buffer_load_dwordx2 {vr(CH+2*t,2)}, {vr(vCo)}, s[{40+4*t}:{43+4*t}], s{sCp} offen offset:{256*j+128} {cspol}")
        A("  s_waitcnt vmcnt(0)")
        for r in range(4):
            A(f"  v_perm_b32 {vr(T+4+r)}, {vr(CH+r//2)}, {vr(CH+2+r//2)}, s{(sSelLo, sSelHi)[r%2]}")
        A(f"  s_branch L_back{j}")
    A("L_kgeneral:")
    A("  s_waitcnt vmcnt(0) lgkmcnt(0)")
    A(f"  v_subrev_u32 {vr(vSc)}, 512, {vr(vSc)}")
    A(f"  s_lshl_b32 s{sK2}, s{sCp}, 1")
    A(f"  s_add_u32 s{sK2}, s{sK2}, s{sHb}")
    for q in range(4):
        L.extend(ld_v(0, q, sK2))
    for q in range(4):
        L.extend(ld_v(1, q, sK))
    A("  s_branch L_kdone")

    C("wave 4: clears the workgroup's records, compares the table halves of 16 keys, then changes its arrival slot;")
    C("in workgroup 0 it also watches all slots and gives the go-ahead when each differs from what it held on entry")
    SN, CU, OLD, TB = V, V + 4, vRa, V + 8
    A("L_helper:")
    A("  s_setprio 3")
    A(f"  v_and_b32 {vr(vX)}, 63, {vr(vT)}")
    A(f"  v_lshrrev_b32 {vr(vQa)}, {SLOTK-2}, {vr(vX)}")
    A(f"  v_mul_u32_u24 {vr(vQa)}, {SLOTSTRIDE}, {vr(vQa)}")
    A(f"  v_and_b32 {vr(vY)}, {(1 << (SLOTK-2)) - 1}, {vr(vX)}")
    A(f"  v_lshl_add_u32 {vr(vQa)}, {vr(vY)}, 4, {vr(vQa)}")
    A(f"  s_lshr_b32 s66, s2, {SLOTK}")
    A(f"  s_mul_i32 s66, s66, {SLOTSTRIDE}")
    A(f"  s_and_b32 s54, s2, {(1 << SLOTK) - 1}")
    A("  s_lshl2_add_u32 s66, s54, s66")
    A(f"  s_mov_b32 s67, {SLOTS}")
    A("  s_add_u32 s66, s66, s67")
    A(f"  s_mov_b32 s58, {WSUSE}")
    A("  s_mov_b32 s59, 0x20000")
    A("  s_cmp_lg_u32 s2, 0")
    A("  s_waitcnt lgkmcnt(0)")
    A("  s_mov_b64 s[56:57], s[30:31]")
    A("  s_cbranch_scc1 L_nosnap")
    A(f"  buffer_load_dwordx4 {vr(SN,4)}, {vr(vQa)}, s[56:59], s67 offen {xpol}")
    A("L_nosnap:")
    A(f"  buffer_load_dword {vr(OLD)}, off, s[56:59], s66 {xpol}")
    A(f"  v_lshrrev_b32 {vr(vY)}, 3, {vr(vX)}")
    A(f"  v_lshlrev_b32 {vr(vX)}, 4, {vr(vX)}")
    A(f"  v_lshl_add_u32 {vr(vY)}, {vr(vY)}, 7, {vr(vX)}")
    for i in range(4):
        A(f"  v_mov_b32 {vr(W+i)}, -1")
    A(f"  s_mul_i32 s{sRec}, s2, {8*REC}")
    A(f"  s_add_u32 s54, s{sRec}, 1024")
    A(f"  buffer_store_dwordx4 {vr(W,4)}, {vr(vX)}, s[56:59], s{sRec} offen {xpol}")
    for i in range(4):
        A(f"  buffer_store_dwordx4 {vr(W,4)}, {vr(vX)}, s[56:59], s54 offen offset:{1024*i} {xpol}")
    A("  s_andn2_b32 s54, s2, 15")
    A("  s_and_b32 s55, s2, 3")
    A("  s_lshl2_add_u32 s54, s55, s54")
    A("  s_bfe_u32 s55, s2, 0x20002")
    A("  s_add_u32 s54, s54, s55")
    A("  s_lshl_b32 s54, s54, 12")
    A(f"  v_add_u32 {vr(vY)}, s54, {vr(vY)}")
    for t in range(2):
        for u in range(2):
            for h in range(2):
                A(f"  global_load_dwordx4 {vr(TB+16*t+8*u+4*h,4)}, {vr(vY)}, s[{22+2*t}:{23+2*t}] offset:{2048*u+128*h} {cspol}")
    A("  s_barrier")
    if warm:
        C("with no lane active, walk the code that runs once so that it is in the instruction cache")
        A("  s_setprio 0")
        A("  s_mov_b64 exec, 0")
        A("  s_branch L_walk")
        A("L_walked:")
        A("  s_mov_b64 exec, -1")
        A("  s_setprio 3")
    A("  s_waitcnt vmcnt(0)")
    A(f"  s_mov_b64 s[{sBad}:{sBad+1}], 0")
    for i in range(4):
        for r in range(2):
            A(f"  v_cmp_ne_u64 vcc, {vr(TB+8*i+2*r,2)}, {vr(TB+8*i+4+2*r,2)}")
            A(f"  s_or_b64 s[{sBad}:{sBad+1}], s[{sBad}:{sBad+1}], vcc")
    A("  s_cbranch_scc1 L_end")
    if force:
        A(f"  s_cmp_eq_u32 s2, {force}")
        A("  s_cbranch_scc1 L_end")
    A(f"  v_add_u32 {vr(OLD)}, 1, {vr(OLD)}")
    A("  s_mov_b64 exec, 1")
    A(f"  buffer_store_dword {vr(OLD)}, off, s[56:59], s66 {xpol}")
    A("  s_mov_b64 exec, -1")
    A("  s_cmp_lg_u32 s2, 0")
    A("  s_cbranch_scc1 L_end")
    A(f"  s_mov_b32 s{sT}, {polls}")
    A("  s_waitcnt vmcnt(0)")
    A("L_watch:")
    A(f"  buffer_load_dwordx4 {vr(CU,4)}, {vr(vQa)}, s[56:59], s67 offen {xpol}")
    A(f"  s_mov_b64 s[{sBad}:{sBad+1}], 0")
    A("  s_waitcnt vmcnt(0)")
    for i in range(4):
        A(f"  v_cmp_eq_u32 vcc, {vr(SN+i)}, {vr(CU+i)}")
        A(f"  s_or_b64 s[{sBad}:{sBad+1}], s[{sBad}:{sBad+1}], vcc")
    A("  s_cbranch_scc0 L_goahead")
    A(f"  s_mov_b64 exec, s[{sBad}:{sBad+1}]")
    A(f"  s_sub_u32 s{sT}, s{sT}, 1")
    A(f"  s_cmp_lg_u32 s{sT}, 0")
    A("  s_cbranch_scc1 L_watch")
    A("  s_endpgm")
    A("L_goahead:")
    A("  s_mov_b64 exec, 1")
    A(f"  v_mov_b32 {vr(vX)}, 0")
    A(f"  v_mov_b32 {vr(vY)}, 1")
    A(f"  global_store_dword {vr(vX)}, {vr(vY)}, s[28:29] offset:{OKOFF} {xpol}")
    if stamps:
        A("  s_waitcnt vmcnt(0)")
        A("  s_memrealtime  s[78:79]")
        A("  s_waitcnt lgkmcnt(0)")
        A("  s_sub_u32 s78, s78, s76")
        A(f"  v_mov_b32 {vr(vY)}, s78")
        A(f"  global_store_dword {vr(vX)}, {vr(vY)}, s[28:29] offset:{OKOFF-4}")
        A(f"  v_mov_b32 {vr(vY)}, s{sT}")
        A(f"  global_store_dword {vr(vX)}, {vr(vY)}, s[28:29] offset:{OKOFF-8}")
    A("  s_endpgm")
    A('.section .rodata,"a"')
    A(".p2align 6")
    A(f".amdhsa_kernel {kname}")
    A(f"  .amdhsa_next_free_vgpr {NV}")
    A(f"  .amdhsa_next_free_sgpr {96 if (stamps or padto or dwg >= 0) else 74}")
    A(f"  .amdhsa_accum_offset {(NV+3)//4*4}")
    A("  .amdhsa_group_segment_fixed_size 0")
    A("  .amdhsa_kernarg_size 112")
    A("  .amdhsa_user_sgpr_count 2")
    A("  .amdhsa_user_sgpr_kernarg_segment_ptr 1")
    A("  .amdhsa_system_sgpr_workgroup_id_x 1")
    A("  .amdhsa_float_denorm_mode_32 3")
    A(".end_amdhsa_kernel")
    return "\n".join(L) + "\n"

if __name__ == "__main__":
    out = sys.argv[1]
    kw = dict(a.split("=", 1) for a in sys.argv[2:])
    for k in list(kw):
        if kw[k] in ("True", "False"):
            kw[k] = kw[k] == "True"
    open(out, "w").write(gen(**kw))
```
